```python
import torch

def _softmax(x, axis=-1):
    return torch.softmax(x, dim=axis)
def _gelu(x):
    return torch.nn.functional.gelu(x, approximate="tanh")
def _silu(x):
    return torch.nn.functional.silu(x)
def _sigmoid(x):
    return torch.sigmoid(x)
def _layernorm(x, axis=-1, eps=1e-5):
    m = x.mean(dim=axis, keepdim=True)
    v = x.var(dim=axis, keepdim=True, unbiased=False)
    return (x - m) / torch.sqrt(v + eps)
def _scatter_add(tgt, idx, src, axis=0):
    return tgt.clone().index_add_(axis, idx, src)
def _segment_sum(src, seg, n):
    out = torch.zeros((n,) + src.shape[1:], dtype=src.dtype)
    return out.index_add_(0, seg, src)
def _pad(x, pw):
    flat = tuple(v for pair in reversed(pw) for v in pair)
    return torch.nn.functional.pad(x, flat)

kernel_name = 'concat_heads__gqa_block_cached__gqa_block_cached__near_ridge'

def setup_inputs():

    _w = (lambda a: (lambda t: t.to(torch.bfloat16) if t.is_floating_point() else t)(torch.as_tensor(a)))
    def _A_setup():
        B, Sq, D = 16, 64, 640
        Hq, Hkv, Sk, Dh = 32, 32, 512, 192
        assert Hq % Hkv == 0, (Hq, Hkv)
        return {
            "x": _w((lambda *s: torch.randn(*s, dtype=torch.bfloat16) * 0.8)(B, Sq, D)),
            "k_cache": _w((lambda *s: torch.randn(*s, dtype=torch.bfloat16) * 0.8)(B, Hkv, Sk, Dh)),
            "v_cache": _w((lambda *s: torch.randn(*s, dtype=torch.bfloat16) * 0.05)(B, Hkv, Sk, Dh)),
            "wq": _w((lambda *s: torch.randn(*s, dtype=torch.bfloat16) * 0.8)(D, Hq * Dh) * (D ** -0.5)),
            "wo": _w((lambda *s: torch.randn(*s, dtype=torch.bfloat16) * 0.05)(Hq * Dh, D) * ((Hq * Dh) ** -0.5)),
        }
    _A_in = _A_setup()

    def _B_setup():
        B, Sq, D = 16, 64, 640
        Hq, Hkv, Sk, Dh = 32, 32, 512, 192
        assert Hq % Hkv == 0, (Hq, Hkv)
        return {
            "x": _w((lambda *s: torch.randn(*s, dtype=torch.bfloat16) * 0.8)(B, Sq, D)),
            "k_cache": _w((lambda *s: torch.randn(*s, dtype=torch.bfloat16) * 0.8)(B, Hkv, Sk, Dh)),
            "v_cache": _w((lambda *s: torch.randn(*s, dtype=torch.bfloat16) * 0.05)(B, Hkv, Sk, Dh)),
            "wq": _w((lambda *s: torch.randn(*s, dtype=torch.bfloat16) * 0.8)(D, Hq * Dh) * (D ** -0.5)),
            "wo": _w((lambda *s: torch.randn(*s, dtype=torch.bfloat16) * 0.05)(Hq * Dh, D) * ((Hq * Dh) ** -0.5)),
        }
    _B_in = _B_setup()

    return {
        "A_x": _A_in["x"],
        "A_k_cache": _A_in["k_cache"],
        "A_v_cache": _A_in["v_cache"],
        "A_wq": _A_in["wq"],
        "A_wo": _A_in["wo"],
        "B_x": _B_in["x"],
        "B_k_cache": _B_in["k_cache"],
        "B_v_cache": _B_in["v_cache"],
        "B_wq": _B_in["wq"],
        "B_wo": _B_in["wo"],
    }

def reference(A_x, A_k_cache, A_v_cache, A_wq, A_wo, B_x, B_k_cache, B_v_cache, B_wq, B_wo):
    def _A_ref(x, k_cache, v_cache, wq, wo):
        B, Sq, D = x.shape
        Hq, Dh = 32, 192
        Hkv = k_cache.shape[1]
        rep = Hq // Hkv
        q = (lambda x, *d: x.permute(*d))((x @ wq).reshape(B, Sq, Hq, Dh), 0, 2, 1, 3)
        k = (lambda x, n, axis: torch.repeat_interleave(x, n, dim=axis))(k_cache, rep, axis=1)
        v = (lambda x, n, axis: torch.repeat_interleave(x, n, dim=axis))(v_cache, rep, axis=1)
        scores = torch.einsum("bhqd,bhkd->bhqk", q, k) * (Dh ** -0.5)
        p = _softmax(scores, axis=-1)
        o = torch.einsum("bhqk,bhkd->bhqd", p, v)
        return (lambda x, *d: x.permute(*d))(o, 0, 2, 1, 3).reshape(B, Sq, Hq * Dh) @ wo

    def _B_ref(x, k_cache, v_cache, wq, wo):
        B, Sq, D = x.shape
        Hq, Dh = 32, 192
        Hkv = k_cache.shape[1]
        rep = Hq // Hkv
        q = (lambda x, *d: x.permute(*d))((x @ wq).reshape(B, Sq, Hq, Dh), 0, 2, 1, 3)
        k = (lambda x, n, axis: torch.repeat_interleave(x, n, dim=axis))(k_cache, rep, axis=1)
        v = (lambda x, n, axis: torch.repeat_interleave(x, n, dim=axis))(v_cache, rep, axis=1)
        scores = torch.einsum("bhqd,bhkd->bhqk", q, k) * (Dh ** -0.5)
        p = _softmax(scores, axis=-1)
        o = torch.einsum("bhqk,bhkd->bhqd", p, v)
        return (lambda x, *d: x.permute(*d))(o, 0, 2, 1, 3).reshape(B, Sq, Hq * Dh) @ wo

    a = _A_ref(A_x, A_k_cache, A_v_cache, A_wq, A_wo)
    b = _B_ref(B_x, B_k_cache, B_v_cache, B_wq, B_wo)
    return torch.concatenate([a, b], axis=-1)
```

```python
def rr(p, lo, n=1):
    return [f"{p}{i}" for i in range(lo, lo + n)]


def R(p, lo, n=1):
    return f"{p}{lo}" if n == 1 else f"{p}[{lo}:{lo + n - 1}]"


class I:
    __slots__ = ("t", "k", "rd", "wr", "cost", "tag", "srcc", "ab", "minpos", "data")

    def __init__(self, t, k, rd=(), wr=(), cost=4, tag=None, srcc=(), ab=(), data=()):
        self.t = t
        self.k = k
        self.rd = list(rd)
        self.wr = list(wr)
        self.cost = cost
        self.tag = tag
        self.srcc = list(srcc)
        self.ab = list(ab)
        self.minpos = 0
        self.data = list(data)


def valu(t, wr, rd):
    return I(t, "valu", rd, wr, 4)


def trans(t, wr, rd):
    return I(t, "trans", rd, wr, 8)


def salu(t, wr=(), rd=()):
    return I(t, "salu", rd, wr, 2)


def mfma(dp, d, ap, a, bp, b, first):
    D = rr(dp, d, 16)
    A = rr(ap, a, 4)
    B = rr(bp, b, 4)
    c = "0" if first else R(dp, d, 16)
    t = f"v_mfma_f32_32x32x16_bf16 {R(dp, d, 16)}, {R(ap, a, 4)}, {R(bp, b, 4)}, {c}"
    return I(t, "mfma", A + B + ([] if first else D), D, 8, srcc=([] if first else D), ab=A + B)


def ds_rd(op, dp, d, n, addr, off):
    return I(f"{op} {R(dp, d, n)}, v{addr} offset:{off}", "ds_rd", [f"v{addr}"], rr(dp, d, n), 4)


def ds_wr(op, addr, sp, s, n, off):
    return I(f"{op} v{addr}, {R(sp, s, n)} offset:{off}", "ds_wr", [f"v{addr}"] + rr(sp, s, n), [], 8 if n > 1 else 4)


def waitbar(tag):
    return I("", "waitbar", tag=tag)


def waitvm(tag):
    return I("", "waitvm", tag=tag)


VALU_K = ("valu", "trans", "perm")


def need_states(p, c):
    n = 0
    pw = set(p.wr)
    if p.k in VALU_K:
        vw = {r for r in pw if r[0] in "va" and r != "vcc"}
        if c.k == "mfma" and vw & set(c.rd):
            n = max(n, 2)
        if c.k == "perm" and vw & set(c.rd):
            n = max(n, 2)
        if p.k == "trans" and c.k in VALU_K and vw & set(c.rd):
            n = max(n, 1)
        if c.t.startswith("v_readfirstlane") and vw & set(c.rd):
            n = max(n, 1)
        sw = {r for r in pw if r[0] == "s" or r == "vcc"}
        if sw & set(c.rd):
            if c.k in ("dma", "vld", "vst"):
                n = max(n, 5)
            elif c.k in VALU_K:
                n = max(n, 2)
            else:
                n = max(n, 4)
    if p.k == "mfma":
        if c.k == "mfma":
            if pw & set(c.ab):
                n = max(n, 12)
            if pw & set(c.srcc) and p.wr != c.srcc:
                n = max(n, 10)
            if not c.srcc and pw & set(c.wr):
                n = max(n, 10)
        elif c.k in VALU_K or c.k in ("ds_rd", "ds_wr", "vst", "vld", "dma"):
            if pw & (set(c.rd) | set(c.wr)):
                n = max(n, 12)
        if c.k in VALU_K and set(p.srcc) & set(c.wr):
            n = max(n, 7)
    if p.k == "salu" and "m0" in pw and c.k == "dma":
        n = max(n, 1)
    if p.k == "vst" and set(p.data) & set(c.wr):
        n = max(n, 2)
    return n


def finalize(prog):
    out = []
    ds_n = 0
    ds_done = 0
    pend = {}
    vm_tags = []
    vm_done = 0
    vpend = {}
    stats = {"nop": 0, "lgkm": 0}

    def emit(i, states=1):
        out.append((i, states))

    def vm_count(tag):
        last = -1
        for idx, tg in enumerate(vm_tags):
            if tg is not None and tg <= tag:
                last = idx
        return last

    for ins in prog:
        if ins.k in ("waitbar", "waitvm"):
            parts = []
            if ins.tag is not None:
                last = len(vm_tags) - 1 if ins.tag == "all" else vm_count(ins.tag)
                if last >= vm_done:
                    n = len(vm_tags) - 1 - last
                    assert n <= 63, n
                    parts.append(f"vmcnt({n})")
                    vm_done = last + 1
            if ins.k == "waitbar" and ds_done < ds_n:
                parts.append("lgkmcnt(0)")
                ds_done = ds_n
            if parts:
                emit(I("s_waitcnt " + " ".join(parts), "wait"))
            if ins.k == "waitbar":
                emit(I("s_barrier", "barrier"))
            continue
        touched = set(ins.rd) | set(ins.wr)
        need = -1
        for r in touched:
            s = pend.get(r)
            if s is not None and s >= ds_done:
                need = max(need, s)
        vneed = -1
        for r in touched:
            s = vpend.get(r)
            if s is not None and s >= vm_done:
                vneed = max(vneed, s)
        parts = []
        if vneed >= 0:
            n = min(len(vm_tags) - 1 - vneed, 63)
            parts.append(f"vmcnt({n})")
            vm_done = len(vm_tags) - n
        if need >= 0:
            n = min(ds_n - 1 - need, 15)
            parts.append(f"lgkmcnt({n})")
            ds_done = ds_n - n
            stats["lgkm"] += 1
        if parts:
            emit(I("s_waitcnt " + " ".join(parts), "wait"))
        dist = 0
        pad = 0
        for p, st in reversed(out):
            if dist >= 12:
                break
            pad = max(pad, need_states(p, ins) - dist)
            dist += st
        if pad > 0:
            emit(I(f"s_nop {pad - 1}", "nop"), pad)
            stats["nop"] += pad
        emit(ins)
        if ins.k in ("ds_rd", "ds_wr"):
            for r in ins.wr:
                pend[r] = ds_n
            ds_n += 1
        if ins.k in ("dma", "vld", "vst"):
            if ins.k == "vld":
                for r in ins.wr:
                    vpend[r] = len(vm_tags)
            vm_tags.append(ins.tag)
    return [i.t for i, _ in out], stats
```

```python
import sys
from asmlib import *

BASE = "concat_heads__gqa_block_cached__gqa_block_cached__near_ridge"

S0 = 0
QA = 128
POOL = 176
XF = 208
VKV, VWQ, VXO = 224, 226, 228
TRB, RB = 230, 231
AB = 232
AT = 236
XR, XW = 238, 239
VM, VMC, VL0, VL1 = 240, 241, 242, 243
T0, T1, T2, T3 = 244, 245, 246, 247
VST = 248
NVGPR = 252
OUT, OA, QF = 0, 160, 208
SK, SV, SWQ, SWO, SX, SWS, SCODE = 24, 28, 32, 36, 40, 44, 80
S_W2K, S_KH, S_QH, S_C = 48, 49, 50, 51
ST = 52
TB1, TB2 = 60, 70
S_WAVE = 58
SLOT0, SLOTSZ, XOFF = 32768, 32768, 24576
QHS = 16384
MXO, LXO = 12288, 13312

DEFAULT = dict(nt_kv="nt", nt_w="", nt_x="", st_flags="", rot=1, order="alt", stamps=0, codepf=1, dbg=None)


def default_seq(order):
    Q = lambda u, j: ("Q", u, j)
    K = lambda u, j: ("K", u, j)
    V = lambda u, j: ("V", u, j)
    O = lambda u, j: ("O", u, j)
    N = ("N", 0, 0)
    s = [Q(0, j) for j in range(10)] + [N]
    if order == "alt":
        s += [K(0, j) for j in range(8)] + [Q(1, 0), Q(1, 1)]
        for j in range(6):
            s += [V(0, j), Q(1, j + 2)]
        s += [V(0, 6), V(0, 7), Q(1, 8), Q(1, 9)]
        for u in (1, 2):
            s += [O(u - 1, 0), O(u - 1, 1)]
            for j in range(8):
                s += [K(u, j), O(u - 1, j + 2)]
            for j in range(8):
                s += [Q(u + 1, j), V(u, j)]
            s += [Q(u + 1, 8), Q(u + 1, 9)]
        s += [O(2, 0), O(2, 1)]
        for j in range(6):
            s += [K(3, j), O(2, j + 2)]
        s += [K(3, 6), K(3, 7), O(2, 8), O(2, 9)]
        s += [V(3, j) for j in range(8)]
    elif order == "coarse":
        s += [K(0, j) for j in range(8)] + [Q(1, 0), Q(1, 1)] + [V(0, j) for j in range(8)] + [Q(1, j) for j in range(2, 10)]
        for u in (1, 2):
            s += [O(u - 1, 0), O(u - 1, 1)] + [K(u, j) for j in range(8)] + [O(u - 1, j) for j in range(2, 10)]
            s += [V(u, j) for j in range(8)] + [Q(u + 1, j) for j in range(10)]
        s += [O(2, 0), O(2, 1)] + [K(3, j) for j in range(8)] + [O(2, j) for j in range(2, 10)]
        s += [V(3, j) for j in range(8)]
    elif order == "pair":
        s += [K(0, j) for j in range(8)] + [Q(1, 0), Q(1, 1)]
        for p in range(3):
            s += [V(0, 2 * p), V(0, 2 * p + 1), Q(1, 2 * p + 2), Q(1, 2 * p + 3)]
        s += [V(0, 6), V(0, 7), Q(1, 8), Q(1, 9)]
        for u in (1, 2, 3):
            s += [O(u - 1, 0), O(u - 1, 1)]
            for p in range(4):
                s += [K(u, 2 * p), K(u, 2 * p + 1), O(u - 1, 2 * p + 2), O(u - 1, 2 * p + 3)]
            if u < 3:
                for p in range(4):
                    s += [V(u, 2 * p), V(u, 2 * p + 1), Q(u + 1, 2 * p), Q(u + 1, 2 * p + 1)]
                s += [Q(u + 1, 8), Q(u + 1, 9)]
            else:
                s += [V(3, j) for j in range(8)]
    s += [N] + [O(3, j) for j in range(10)] + [N]
    return s


def dma_tile(cfg, ent, k):
    ty, u, j = ent
    slot = SLOT0 + (k % 4) * SLOTSZ
    g = []

    def ld(vo, srd, so, m0c, imm, fl):
        off = f" offset:{imm}" if imm else ""
        fl = f" {fl}" if fl else ""
        return [salu(f"s_add_u32 m0, s{S_W2K}, {m0c}", ["m0"], [f"s{S_W2K}"]),
                I(f"buffer_load_dwordx4 v{vo}, s[{srd}:{srd + 3}], s{so} offen{off}{fl} lds", "dma",
                  [f"v{vo}", f"s{so}", "m0"], [], 12, tag=k)]

    if ty in "KVQ":
        if ty == "Q":
            pre = salu(f"s_add_u32 s{ST}, s{TB1 + j}, {u * 384}", [f"s{ST}"])
            vo, srd, fl = VWQ, SWQ, cfg["nt_w"]
        else:
            pre = salu(f"s_mov_b32 s{ST}, {u * 196608 + j * 24576}", [f"s{ST}"])
            vo, srd, fl = VKV, (SK if ty == "K" else SV), cfg["nt_kv"]
        if ty == "Q":
            for par in range(2):
                g.append(ld(VXO + par, SX, TB2 + j, slot + XOFF + par * 1024, 0, cfg["nt_x"]))
        first = True
        for par in range(2):
            for cb in range(3):
                x = ld(vo + par, srd, ST, slot + (8 * cb + par) * 1024 - 128 * cb, 128 * cb, fl)
                if first:
                    x = [pre] + x
                    first = False
                g.append(x)
    else:
        for i in range(3):
            pre = salu(f"s_add_u32 s{ST}, s{TB2 + j}, {u * 245760 + 81920 * i}", [f"s{ST}"])
            for par in range(2):
                x = ld(VXO + par, SWO, ST, slot + (8 * i + par) * 1024, 0, cfg["nt_w"])
                g.append(([pre] if par == 0 else []) + x)
    return g


def addr_setup(ent, k):
    ty = ent[0]
    slot = SLOT0 + (k % 4) * SLOTSZ
    r = []
    if ty in "KQ":
        sreg, base = (S_KH, slot) if ty == "K" else (S_QH, slot + XOFF)
        r.append(salu(f"s_add_u32 s{ST + 1}, s{sreg}, {base}", [f"s{ST + 1}"]))
        r.append(valu(f"v_add_u32 v{AB}, s{ST + 1}, v{RB}", [f"v{AB}"], [f"v{RB}"]))
        r.append(valu(f"v_xor_b32 v{AB + 1}, 32, v{AB}", [f"v{AB + 1}"], [f"v{AB}"]))
        r.append(valu(f"v_xor_b32 v{AB + 2}, 64, v{AB}", [f"v{AB + 2}"], [f"v{AB}"]))
        r.append(valu(f"v_xor_b32 v{AB + 3}, 64, v{AB + 1}", [f"v{AB + 3}"], [f"v{AB + 1}"]))
    if ty in "VQO":
        r.append(valu(f"v_add_u32 v{AT}, {slot}, v{TRB}", [f"v{AT}"], [f"v{TRB}"]))
        r.append(valu(f"v_xor_b32 v{AT + 1}, 16, v{AT}", [f"v{AT + 1}"], [f"v{AT}"]))
    return r


def tile_ops(ent, m0idx):
    ty, u, j = ent
    mf, rg = [], []
    for m in range(12):
        p = POOL + 4 * ((m0idx + m) % 8)
        rd = []
        if ty == "K":
            if j == 0:
                rd.append(ds_rd("ds_read_b128", "a", QF + 4 * m, 4, XR, 1024 * m))
            rd.append(ds_rd("ds_read_b128", "v", p, 4, AB + (m & 3), 8192 * (m >> 2)))
            mf.append(mfma("v", S0 + 16 * j, "v", p, "a", QF + 4 * m, m == 0))
        elif ty == "O":
            if j == 0:
                rd.append(ds_rd("ds_read_b128", "a", OA + 4 * m, 4, XR, 1024 * m))
            for e in range(2):
                rd.append(ds_rd("ds_read_b64_tr_b16", "v", p + 2 * e, 2, AT + e, 2048 * m + 512 * e))
            mf.append(mfma("a", OUT + 16 * j, "v", p, "a", OA + 4 * m, u == 0 and m == 0))
        else:
            t4, dt = divmod(m, 3)
            if dt == 0:
                if ty == "V":
                    rd.append(ds_rd("ds_read_b128", "v", S0 + 16 * j + 4 * t4, 4, XR, (j & 1) * 4096 + 1024 * t4))
                else:
                    rd.append(ds_rd("ds_read_b128", "v", XF + 4 * t4, 4, AB + t4, 0))
            for e in range(2):
                rd.append(ds_rd("ds_read_b64_tr_b16", "v", p + 2 * e, 2, AT + e, (8 * dt + 2 * t4) * 1024 + 512 * e))
            if ty == "V":
                mf.append(mfma("a", OA + 16 * dt, "v", p, "v", S0 + 16 * j + 4 * t4, j == 0 and t4 == 0))
            else:
                mf.append(mfma("v", QA + 16 * dt, "v", p, "v", XF + 4 * t4, j == 0 and t4 == 0))
        rg.append(rd)
    return mf, rg


def v(n):
    return f"v{n}"


def task_max(j):
    s = S0 + 16 * j
    r = []
    if j == 0:
        r.append(valu(f"v_max3_f32 v{VM}, v{s}, v{s + 1}, v{s + 2}", [v(VM)], rr("v", s, 3)))
        for i in range(3, 15, 2):
            r.append(valu(f"v_max3_f32 v{VM}, v{VM}, v{s + i}, v{s + i + 1}", [v(VM)], [v(VM)] + rr("v", s + i, 2)))
        r.append(valu(f"v_max_f32 v{VM}, v{VM}, v{s + 15}", [v(VM)], [v(VM), v(s + 15)]))
    else:
        for i in range(0, 16, 2):
            r.append(valu(f"v_max3_f32 v{VM}, v{VM}, v{s + i}, v{s + i + 1}", [v(VM)], [v(VM)] + rr("v", s + i, 2)))
    return r


def cross_half(reg, op, off):
    return [valu(f"v_mov_b32 v{T0}, v{reg}", [v(T0)], [v(reg)]),
            I(f"v_permlane32_swap_b32 v{T0}, v{reg}", "perm", [v(T0), v(reg)], [v(T0), v(reg)]),
            valu(f"{op} v{reg}, v{reg}, v{T0}", [v(reg)], [v(reg), v(T0)]),
            ds_wr("ds_write_b32", XW, "v", reg, 1, off)]


def task_maxr():
    return [ds_rd("ds_read_b32", "v", T1, 1, XR, MXO), ds_rd("ds_read_b32", "v", T2, 1, XR, MXO + 2048),
            valu(f"v_max_f32 v{T1}, v{T1}, v{T2}", [v(T1)], [v(T1), v(T2)]),
            valu(f"v_mul_f32 v{VMC}, s{S_C}, v{T1}", [v(VMC)], [v(T1)])]


def task_p(j):
    s = S0 + 16 * j
    r = []
    fma = lambda i: valu(f"v_fma_f32 v{s + i}, v{s + i}, s{S_C}, -v{VMC}", [v(s + i)], [v(s + i), v(VMC)])
    ex = lambda i: trans(f"v_exp_f32 v{s + i}, v{s + i}", [v(s + i)], [v(s + i)])

    def add(i):
        l = VL0 + (i & 1)
        if j == 0 and i < 2:
            return valu(f"v_mov_b32 v{l}, v{s + i}", [v(l)], [v(s + i)])
        return valu(f"v_add_f32 v{l}, v{l}, v{s + i}", [v(l)], [v(l), v(s + i)])

    cvt = lambda kk: valu(f"v_cvt_pk_bf16_f32 v{s + kk}, v{s + 2 * kk}, v{s + 2 * kk + 1}", [v(s + kk)], rr("v", s + 2 * kk, 2))
    r += [fma(0), fma(1)]
    for kk in range(8):
        r += [ex(2 * kk), ex(2 * kk + 1)]
        if kk < 7:
            r += [fma(2 * kk + 2), fma(2 * kk + 3)]
        r += [add(2 * kk), add(2 * kk + 1), cvt(kk)]
        if kk in (3, 7):
            a = kk >> 2
            r.append(ds_wr("ds_write_b128", XW, "v", s + 4 * a, 4, (j & 1) * 4096 + 1024 * a))
    return r


def task_lx():
    return [valu(f"v_add_f32 v{VL0}, v{VL0}, v{VL1}", [v(VL0)], [v(VL0), v(VL1)])] + cross_half(VL0, "v_add_f32", LXO)


def task_onorm():
    pre = [ds_rd("ds_read_b32", "v", T1, 1, XR, LXO), ds_rd("ds_read_b32", "v", T2, 1, XR, LXO + 2048),
           valu(f"v_add_f32 v{T1}, v{T1}, v{T2}", [v(T1)], [v(T1), v(T2)]),
           trans(f"v_rcp_f32 v{T3}, v{T1}", [v(T3)], [v(T1)])]
    r = []
    for dt in range(3):
        s = S0 + 16 * dt
        for a in range(2):
            for i in range(8 * a, 8 * a + 8):
                r.append(valu(f"v_accvgpr_read_b32 v{s + i}, a{OA + 16 * dt + i}", [v(s + i)], [f"a{OA + 16 * dt + i}"]))
            for i in range(8 * a, 8 * a + 8):
                r.append(valu(f"v_mul_f32 v{s + i}, v{s + i}, v{T3}", [v(s + i)], [v(s + i), v(T3)]))
            for kk in range(4):
                d = s + 8 * a + kk
                r.append(valu(f"v_cvt_pk_bf16_f32 v{d}, v{s + 8 * a + 2 * kk}, v{s + 8 * a + 2 * kk + 1}", [v(d)], rr("v", s + 8 * a + 2 * kk, 2)))
            r.append(ds_wr("ds_write_b128", XW, "v", s + 8 * a, 4, 4096 * dt + 1024 * a))
    return pre, r


def task_qcvt():
    c, w = [], []
    for dt in range(3):
        s = QA + 16 * dt
        for a in range(2):
            for kk in range(4):
                d = s + 8 * a + kk
                c.append(valu(f"v_cvt_pk_bf16_f32 v{d}, v{s + 8 * a + 2 * kk}, v{s + 8 * a + 2 * kk + 1}", [v(d)], rr("v", s + 8 * a + 2 * kk, 2)))
            w.append(ds_wr("ds_write_b128", XW, "v", s + 8 * a, 4, 4096 * dt + 1024 * a))
    return c, w


def task_out(cfg, j):
    s = S0 + 16 * (j % 4)
    r = [salu(f"s_lshl_b32 s{ST + 2}, s{TB2 + j}, 6", [f"s{ST + 2}"])]
    fl = f" {cfg['st_flags']}" if cfg["st_flags"] else ""
    for a in range(2):
        for i in range(8 * a, 8 * a + 8):
            r.append(valu(f"v_accvgpr_read_b32 v{s + i}, a{OUT + 16 * j + i}", [v(s + i)], [f"a{OUT + 16 * j + i}"]))
        for kk in range(4):
            d = s + 8 * a + kk
            r.append(valu(f"v_cvt_pk_bf16_f32 v{d}, v{s + 8 * a + 2 * kk}, v{s + 8 * a + 2 * kk + 1}", [v(d)], rr("v", s + 8 * a + 2 * kk, 2)))
        off = f" offset:{1024 * a}" if a else ""
        r.append(I(f"buffer_store_dwordx4 v[{s + 8 * a}:{s + 8 * a + 3}], v{VST}, s[{SWS}:{SWS + 3}], s{ST + 2} offen{off}{fl}", "vst",
                   rr("v", s + 8 * a, 4) + [v(VST), f"s{ST + 2}"], [], 12, data=rr("v", s + 8 * a, 4)))
    return r


def setmin(lst, pos):
    for i in lst:
        i.minpos = pos
    return lst


def split(lst, n):
    tot = sum(i.cost for i in lst)
    parts, cur, acc = [], [], 0
    for i in lst:
        if acc + i.cost / 2 > tot * (len(parts) + 1) / n and len(parts) < n - 1:
            parts.append(cur)
            cur = []
        cur.append(i)
        acc += i.cost
    parts.append(cur)
    while len(parts) < n:
        parts.append([])
    return parts


def build_main(cfg):
    seq = cfg.get("seq") or default_seq(cfg["order"])
    n = len(seq)
    idx = {e: i for i, e in enumerate(seq) if e[0] != "N"}
    real = [i for i, e in enumerate(seq) if e[0] != "N"]
    kof = {i: k for k, i in enumerate(real)}
    tasks = [[] for _ in range(n)]
    LATE = 5
    for u in range(4):
        for j in range(8):
            i = idx[("K", u, j)]
            tasks[i + 1] += setmin(task_max(j), LATE)
        i7 = idx[("K", u, 7)]
        tasks[i7 + 1] += setmin(cross_half(VM, "v_max_f32", MXO), LATE)
        iv = [idx[("V", u, j)] for j in range(8)]
        assert iv[0] >= i7 + 3
        tasks[i7 + 2] += task_maxr()
        lo = i7 + 2
        for j in range(8):
            t = task_p(j) + (task_lx() if j == 7 else [])
            parts = split(t, iv[j] - lo)
            for d, p in enumerate(parts):
                tasks[lo + d] += p
            lo = iv[j]
        io0 = idx[("O", u, 0)]
        pre, body = task_onorm()
        assert io0 >= iv[7] + 2
        parts = split(body, io0 - iv[7] - 1)
        tasks[iv[7] + 1] += pre + setmin(parts[0], LATE)
        for d, p in enumerate(parts[1:]):
            tasks[iv[7] + 2 + d] += p
        iq9 = idx[("Q", u, 9)]
        ik0 = idx[("K", u, 0)]
        assert ik0 >= iq9 + 2
        c, w = task_qcvt()
        tasks[iq9 + 1] += setmin(c, LATE)
        tasks[ik0 - 1] += setmin(w, LATE if ik0 - 1 == iq9 + 1 else 0)
        if u > 0:
            assert ik0 - 1 > idx[("O", u - 1, 0)]
            assert idx[("O", u - 1, 9)] < iv[0]
        if u < 3:
            assert idx[("Q", u + 1, 0)] >= ik0
    for j in range(10):
        tasks[idx[("O", 3, j)] + 1] += setmin(task_out(cfg, j), LATE)

    prog = []
    for k in range(3):
        for g in dma_tile(cfg, seq[real[k]], k):
            prog += g
    prog += addr_setup(seq[0], 0)
    left = []
    for i, ent in enumerate(seq):
        isreal = ent[0] != "N"
        k = kof.get(i)
        if cfg["stamps"]:
            prog += stamp(i)
        prog.append(waitbar(k if isreal else None))
        if isreal:
            mf, rg = tile_ops(ent, 12 * k)
        else:
            mf, rg = [], []
        mlist = left + mf[:9]
        npos = len(mlist) + 1
        fixed = [[] for _ in range(npos)]
        if isreal:
            if left:
                fixed[0] += rg[0] + rg[1]
                for g in range(2, 12):
                    fixed[g - 1] += rg[g]
            else:
                for g in range(5):
                    fixed[0] += rg[g]
                for g in range(5, 12):
                    fixed[g - 4] += rg[g]
        prev_real = i == 0 or seq[i - 1][0] != "N"
        knext = None
        if prev_real:
            kk = (kof[i - 1] + 4) if i > 0 else 3
            if kk < len(real):
                knext = kk
        if knext is not None:
            groups = dma_tile(cfg, seq[real[knext]], knext)
            span = max(npos - 2, 1)
            for gi, g in enumerate(groups):
                pos = min(1 + gi * span // len(groups), npos - 1)
                if any(x.k == "dma" for x in fixed[pos]):
                    fixed[pos] += g
                else:
                    fixed[pos] = g[:-1] + fixed[pos] + g[-1:]
        if i + 1 < n and seq[i + 1][0] != "N":
            fixed[npos - 1] += addr_setup(seq[i + 1], kof[i + 1])
        q = list(tasks[i])
        if not left:
            for t in q:
                t.minpos = 0
        for t in q:
            t.minpos = min(t.minpos, npos - 1)
        tot = sum(x.cost for f in fixed for x in f) + sum(x.cost for x in q)
        budget = max(24.0, tot / npos)
        for pos in range(npos):
            used = sum(x.cost for x in fixed[pos])
            extra = []
            while q and q[0].minpos <= pos and (used < budget or pos == npos - 1):
                x = q.pop(0)
                extra.append(x)
                used += x.cost
            prog += fixed[pos] + extra
            if pos < len(mlist):
                prog.append(mlist[pos])
        assert not q
        left = mf[9:]
    assert not left
    return prog, seq


def stamp(i):
    return [I(f"s_memtime s[86:87]", "other"), I("s_waitcnt lgkmcnt(0)", "other"),
            I(f"s_sub_u32 s86, s86, s84", "other"),
            I(f"v_writelane_b32 v{249 + (i >> 6)}, s86, {i & 63}", "other")]


def prologue(cfg, codebytes):
    o = []
    a = o.append
    a("s_cmp_ge_u32 s2, 256")
    a("s_cbranch_scc0 L_main_go")
    a("s_endpgm")
    a("L_main_go:")
    a("s_load_dwordx8 s[4:11], s[0:1], 0")
    a("s_load_dwordx2 s[12:13], s[0:1], 32")
    a("s_load_dwordx2 s[14:15], s[0:1], 40")
    a("s_load_dwordx8 s[16:23], s[0:1], 48")
    a(f"s_load_dwordx2 s[{SWS}:{SWS + 1}], s[0:1], 96")
    if cfg["stamps"]:
        a("s_memtime s[84:85]")
        a("s_memrealtime s[88:89]")
    a("v_lshrrev_b32 v1, 6, v0")
    a("v_and_b32 v2, 63, v0")
    a(f"v_readfirstlane_b32 s{S_WAVE}, v1")
    a("s_and_b32 s90, s2, 7")
    a("s_lshr_b32 s91, s2, 3")
    a("s_and_b32 s92, s91, 15")
    a("s_lshr_b32 s93, s91, 4")
    a(f"s_lshl_b32 s{S_W2K}, s{S_WAVE}, 11")
    a(f"s_lshr_b32 s94, s{S_WAVE}, 1")
    a(f"s_and_b32 s95, s{S_WAVE}, 1")
    a(f"s_lshl_b32 s{S_KH}, s94, 12")
    a(f"s_lshl_b32 s{S_QH}, s95, 12")
    a(f"s_mov_b32 s{S_C}, 0x3dd53b95")
    if cfg["codepf"]:
        per = -(-codebytes // 32 // 16) * 16
        assert per <= 4096
        a(f"s_getpc_b64 s[{SCODE}:{SCODE + 1}]")
        a("L_main_pc:")
        a(f"s_mov_b32 s{SCODE + 2}, L_main_end-L_main_pc")
        a(f"s_mov_b32 s{SCODE + 3}, 0x20000")
        a(f"s_mul_i32 s3, s91, {per}")
        a(f"s_lshl_b32 m0, s{S_WAVE}, 10")
        a("v_lshlrev_b32 v3, 4, v0")
        a(f"buffer_load_dwordx4 v3, s[{SCODE}:{SCODE + 3}], s3 offen lds")
    if cfg["rot"]:
        a("s_cmp_ge_u32 s92, 10")
        a("s_cselect_b32 s3, 10, 0")
        a("s_sub_u32 s96, s92, s3")
    else:
        a("s_mov_b32 s96, 0")
    for j in range(10):
        a(f"s_lshl_b32 s{TB2 + j}, s96, 7")
        a(f"s_mul_i32 s{TB1 + j}, s96, 786432")
        if j < 9:
            a("s_add_u32 s96, s96, 1")
            a("s_cmp_eq_u32 s96, 10")
            a("s_cselect_b32 s96, 0, s96")
    a("v_lshrrev_b32 v4, 3, v2")
    a("v_bfe_u32 v5, v2, 4, 1")
    a("v_lshlrev_b32 v5, 2, v5")
    a("v_bfe_u32 v6, v2, 5, 1")
    a("v_or_b32 v5, v5, v6")
    a("v_and_b32 v6, 7, v2")
    a("v_xor_b32 v5, v5, v6")
    a("v_lshlrev_b32 v5, 4, v5")
    a("v_xor_b32 v6, 32, v5")
    a(f"s_lshl_b32 s3, s{S_WAVE}, 4")
    a("v_add_u32 v4, s3, v4")
    a("v_add_u32 v7, 8, v4")
    for reg, stride in ((VKV, 384), (VWQ, 12288), (VXO, 1280)):
        a(f"s_movk_i32 s3, {stride}")
        a(f"v_mad_u32_u24 v{reg}, v4, s3, v5")
        a(f"v_mad_u32_u24 v{reg + 1}, v7, s3, v6")
    a("v_and_b32 v4, 19, v2")
    a("v_bfe_u32 v5, v2, 2, 1")
    a("v_lshl_or_b32 v4, v5, 3, v4")
    a("v_bfe_u32 v5, v2, 3, 1")
    a("v_lshl_or_b32 v4, v5, 2, v4")
    a("v_bfe_u32 v5, v4, 1, 1")
    a("v_bfe_u32 v6, v4, 2, 2")
    a("v_lshl_or_b32 v5, v5, 2, v6")
    a("v_lshrrev_b32 v6, 5, v2")
    a("v_xor_b32 v5, v5, v6")
    a("v_lshlrev_b32 v5, 4, v5")
    a(f"v_lshl_or_b32 v{RB}, v4, 7, v5")
    a("v_bfe_u32 v4, v2, 2, 2")
    a("v_lshrrev_b32 v6, 5, v2")
    a("v_lshrrev_b32 v5, 1, v4")
    a("v_lshlrev_b32 v5, 2, v5")
    a("v_lshl_or_b32 v5, v6, 1, v5")
    a("v_bfe_u32 v7, v2, 4, 1")
    a("v_lshlrev_b32 v7, 1, v7")
    a("v_and_b32 v8, 1, v2")
    a("v_or_b32 v7, v7, v8")
    a("s_lshl_b32 s3, s94, 2")
    a("v_or_b32 v7, s3, v7")
    a("v_xor_b32 v5, v5, v7")
    a("v_lshlrev_b32 v5, 4, v5")
    a("v_bfe_u32 v8, v2, 1, 1")
    a("v_lshl_or_b32 v5, v8, 3, v5")
    a("v_lshl_or_b32 v5, v4, 7, v5")
    a(f"v_lshl_or_b32 v{TRB}, v6, 10, v5")
    a("v_lshlrev_b32 v4, 4, v2")
    a("s_lshl_b32 s3, s95, 14")
    a(f"v_add_u32 v{XR}, s3, v4")
    a("s_lshl_b32 s3, s94, 11")
    a(f"v_add_u32 v{XW}, s3, v{XR}")
    a(f"v_add_u32 v{VST}, s{S_W2K}, v4")
    a("s_waitcnt lgkmcnt(0)")
    a("s_cmp_eq_u32 s93, 0")
    for dst, pa, pb in ((SX, 4, 14), (SK, 6, 16), (SV, 8, 18), (SWQ, 10, 20), (SWO, 12, 22)):
        a(f"s_cselect_b32 s{dst}, s{pa}, s{pb}")
        a(f"s_cselect_b32 s{dst + 1}, s{pa + 1}, s{pb + 1}")

    def shift(srd, sreg, size):
        a(f"s_add_u32 s{srd}, s{srd}, s{sreg}")
        a(f"s_addc_u32 s{srd + 1}, s{srd + 1}, 0")
        a(f"s_mov_b32 s{srd + 2}, {size}")
        a(f"s_mov_b32 s{srd + 3}, 0x20000")

    a("s_mul_i32 s3, s92, 81920")
    shift(SX, 3, 81920)
    a("s_mul_i32 s3, s92, 6291456")
    a("s_mul_i32 s96, s90, 786432")
    a("s_add_u32 s3, s3, s96")
    shift(SK, 3, 786432)
    shift(SV, 3, 786432)
    a("s_mul_i32 s3, s90, 1536")
    shift(SWQ, 3, 639 * 12288 + 1536)
    a("s_mul_i32 s3, s90, 983040")
    shift(SWO, 3, 983040)
    a("s_lshl_b32 s3, s91, 3")
    a("s_add_u32 s3, s3, s90")
    a("s_mul_i32 s3, s3, 81920")
    shift(SWS, 3, 81920)
    return o


def stamp_epilogue():
    o = []
    a = o.append
    a("s_waitcnt vmcnt(0)")
    a("s_memrealtime s[86:87]")
    a("s_load_dwordx2 s[4:5], s[0:1], 96")
    a("s_waitcnt lgkmcnt(0)")
    a("v_writelane_b32 v251, s88, 62")
    a("v_writelane_b32 v251, s86, 63")
    a("s_add_u32 s4, s4, 0x4000000")
    a("s_addc_u32 s5, s5, 0")
    a("s_mov_b32 s6, 0x100000")
    a("s_mov_b32 s7, 0x20000")
    a("s_lshl_b32 s3, s2, 2")
    a(f"s_add_u32 s3, s3, s{S_WAVE}")
    a("s_mul_i32 s3, s3, 768")
    a(f"v_lshrrev_b32 v4, 2, v{XR}")
    a("v_and_b32 v4, 255, v4")
    a("buffer_store_dword v249, v4, s[4:7], s3 offen")
    a("buffer_store_dword v250, v4, s[4:7], s3 offen offset:256")
    a("buffer_store_dword v251, v4, s[4:7], s3 offen offset:512")
    return o


def reduce_kernel(name):
    o = []
    a = o.append
    a(".p2align 8")
    a(f".type {name},@function")
    a(f"{name}:")
    a("s_cmp_ge_u32 s2, 640")
    a("s_cbranch_scc1 L_red_end")
    a("s_load_dwordx2 s[4:5], s[0:1], 96")
    a("s_load_dwordx2 s[8:9], s[0:1], 80")
    a("s_mul_hi_u32 s12, s2, 0x0cccccd0")
    a("s_mul_i32 s13, s12, 20")
    a("s_sub_u32 s13, s2, s13")
    a("s_lshr_b32 s14, s13, 1")
    a("s_and_b32 s15, s13, 1")
    a("v_lshrrev_b32 v1, 3, v0")
    a("v_bfe_u32 v2, v0, 2, 1")
    a("v_bfe_u32 v3, v0, 1, 1")
    a("v_and_b32 v4, 1, v0")
    a("v_lshlrev_b32 v5, 12, v2")
    a("v_lshl_or_b32 v5, v3, 10, v5")
    a("v_lshl_or_b32 v5, v4, 9, v5")
    a("v_lshl_or_b32 v5, v1, 4, v5")
    a("s_mul_i32 s16, s12, 655360")
    a("s_lshl_b32 s17, s14, 13")
    a("s_add_u32 s16, s16, s17")
    a("s_lshl_b32 s17, s15, 11")
    a("s_add_u32 s16, s16, s17")
    a("s_waitcnt lgkmcnt(0)")
    a("s_mov_b32 s6, 20971520")
    a("s_mov_b32 s7, 0x20000")
    a("s_mov_b32 s10, 2621440")
    a("s_mov_b32 s11, 0x20000")
    for j in range(8):
        a(f"buffer_load_dwordx4 v[{16 + 4 * j}:{19 + 4 * j}], v5, s[4:7], s16 offen")
        if j < 7:
            a("s_add_u32 s16, s16, 81920")
    a("v_and_b32 v6, 19, v1")
    a("v_bfe_u32 v7, v1, 2, 1")
    a("v_lshl_or_b32 v6, v7, 3, v6")
    a("v_bfe_u32 v7, v1, 3, 1")
    a("v_lshl_or_b32 v6, v7, 2, v6")
    a("s_movk_i32 s18, 2560")
    a("v_and_b32 v7, 7, v0")
    a("v_lshlrev_b32 v7, 4, v7")
    a("v_mad_u32_u24 v6, v6, s18, v7")
    a("s_and_b32 s19, s12, 15")
    a("s_lshl_b32 s19, s19, 1")
    a("s_add_u32 s19, s19, s15")
    a("s_mul_i32 s19, s19, 81920")
    a("s_lshr_b32 s20, s12, 4")
    a("s_mul_i32 s20, s20, 1280")
    a("s_add_u32 s19, s19, s20")
    a("s_lshl_b32 s20, s14, 7")
    a("s_add_u32 s19, s19, s20")
    a("s_mov_b32 s21, 0xffff0000")
    for j in range(8):
        a(f"s_waitcnt vmcnt({7 - j})")
        for d in range(4):
            src = 16 + 4 * j + d
            if j == 0:
                a(f"v_lshlrev_b32 v{8 + 2 * d}, 16, v{src}")
                a(f"v_and_b32 v{9 + 2 * d}, s21, v{src}")
            else:
                a(f"v_lshlrev_b32 v48, 16, v{src}")
                a(f"v_and_b32 v49, s21, v{src}")
                a(f"v_add_f32 v{8 + 2 * d}, v{8 + 2 * d}, v48")
                a(f"v_add_f32 v{9 + 2 * d}, v{9 + 2 * d}, v49")
    for d in range(4):
        a(f"v_cvt_pk_bf16_f32 v{52 + d}, v{8 + 2 * d}, v{9 + 2 * d}")
    a("buffer_store_dwordx4 v[52:55], v6, s[8:11], s19 offen")
    a("L_red_end:")
    a("s_endpgm")
    return o


def kd(name, nv, acc, ns):
    return [".p2align 6", f".amdhsa_kernel {name}", f"  .amdhsa_next_free_vgpr {nv}", f"  .amdhsa_next_free_sgpr {ns}",
            f"  .amdhsa_accum_offset {acc}", "  .amdhsa_group_segment_fixed_size 0", "  .amdhsa_kernarg_size 104",
            "  .amdhsa_user_sgpr_count 2", "  .amdhsa_user_sgpr_kernarg_segment_ptr 1",
            "  .amdhsa_system_sgpr_workgroup_id_x 1", "  .amdhsa_float_denorm_mode_32 3", ".end_amdhsa_kernel"]


def generate(**kw):
    cfg = dict(DEFAULT)
    cfg.update(kw)
    prog, seq = build_main(cfg)
    if cfg["codepf"]:
        prog = [I("", "dma", tag=-1)] + prog
    body, stats = finalize(prog)
    body = [t for t in body if t]
    est = sum(4 if (t.startswith("s_") and not any(x in t for x in ("s_add_u32", "s_mov_b32"))) else 8 for t in body) + 1024
    main = BASE + "_kernel"
    red = "reduce_partials_kernel"
    hdr = open("cdna_kernels/" + BASE + ".s.ref").read().split("\n")
    o = [l for l in hdr if l.startswith(";   offset") or l.startswith("; Kernarg")]
    o.append(f"; @launch kernel={main} grid=(256,1,1) block=(256,1,1) lds=163840")
    o.append(f"; @launch kernel={red} grid=(640,1,1) block=(256,1,1) lds=0")
    o += ['.amdgcn_target "amdgcn-amd-amdhsa--gfx950"', ".text", f".globl {main}", ".p2align 8", f".type {main},@function", f"{main}:"]
    o += prologue(cfg, min(est, 131072))
    o += body
    if cfg["stamps"]:
        o += stamp_epilogue()
    o.append("s_endpgm")
    o.append("L_main_end:")
    o.append(f".globl {red}")
    o += reduce_kernel(red)
    o.append('.section .rodata,"a"')
    o += kd(main, 512, 256, 102)
    o += kd(red, 64, 64, 32)
    return "\n".join(o) + "\n", dict(stats=stats, n=len(body), est=est, seq=seq)


if __name__ == "__main__":
    kw = eval("dict(" + (sys.argv[2] if len(sys.argv) > 2 else "") + ")")
    txt, info = generate(**kw)
    open(sys.argv[1], "w").write(txt)
    print(len(txt), "bytes;", info["n"], "instrs; est code", info["est"], info["stats"])
```

```python
import sys
from asmlib import *

BASE = "concat_heads__gqa_block_cached__gqa_block_cached__near_ridge"

S0 = 0
QA = 128
POOL = 176
XF = 208
VKV, VWQ, VXO = 224, 226, 228
TRB, RB = 230, 231
AB = 232
AT = 236
XR, XW = 238, 239
VM, VMC, VL0, VL1 = 240, 241, 242, 243
T0, T1, T2, T3 = 244, 245, 246, 247
VST = 248
NVGPR = 252
OUT, OA, QF = 0, 160, 208
SK, SV, SWQ, SWO, SX, SWS, SCODE = 24, 28, 32, 36, 40, 44, 80
S_W2K, S_KH, S_QH, S_C = 48, 49, 50, 51
ST = 52
TB1, TB2 = 60, 70
S_WAVE = 58
SLOT0, SLOTSZ = 65536, 24576
XP0, XPSZ = 0, 8192
QX0 = 32768
MXO, LXO = 57344, 58368

DEFAULT = dict(nt_kv="nt", nt_w="", nt_x="", st_flags="", rot=1, order="alt", stamps=0, codepf=1, dbg=None, wlast=1, ntfirst=0)


KPH = "Ho Ho Hoo Ho Ho Ho Ho Hoo "
PATS = {
    "uni": "pat:HHqHHqHHqHHqq HHqHHqHqHqHqH " + 2 * "HoHoHooHoHoHooHoHoq HqHqqHqHqHqqHqHqH " + "HoHoHooHoHoHoHoHoo HHHHHHHH",
    "uni2": "pat:HHqHqHqHqHqHHqq HqHqHqHqHqHqHqH " + KPH + "HqHqHqHqHqHqHqHq " + "HHoHooHoHoHooHoHoo " + "HqHqHqHqHqHqqHqH " + KPH + "HHHHHHHH",
}


def default_seq(order):
    order = PATS.get(order, order)
    Q = lambda u, j: ("Q", u, j)
    K = lambda u, j: ("K", u, j)
    V = lambda u, j: ("V", u, j)
    O = lambda u, j: ("O", u, j)
    N = ("N", 0, 0)
    s = [Q(0, j) for j in range(10)] + [N]
    if order == "alt":
        s += [K(0, j) for j in range(8)] + [Q(1, 0), Q(1, 1)]
        for j in range(6):
            s += [V(0, j), Q(1, j + 2)]
        s += [V(0, 6), V(0, 7), Q(1, 8), Q(1, 9)]
        for u in (1, 2):
            s += [O(u - 1, 0), O(u - 1, 1)]
            for j in range(8):
                s += [K(u, j), O(u - 1, j + 2)]
            for j in range(8):
                s += [Q(u + 1, j), V(u, j)]
            s += [Q(u + 1, 8), Q(u + 1, 9)]
        s += [O(2, 0), O(2, 1)]
        for j in range(6):
            s += [K(3, j), O(2, j + 2)]
        s += [K(3, 6), K(3, 7), O(2, 8), O(2, 9)]
        s += [V(3, j) for j in range(8)]
    elif order.startswith("pat:"):
        qs = [Q(u, j) for u in (1, 2, 3) for j in range(10)]
        os_ = [O(u, j) for u in (0, 1, 2) for j in range(10)]
        hs = [f(u, j) for u in range(4) for f in (K, V) for j in range(8)]
        for ch in order[4:]:
            if ch == "H":
                s.append(hs.pop(0))
            elif ch == "q":
                s.append(qs.pop(0))
            elif ch == "o":
                s.append(os_.pop(0))
        assert not qs and not os_ and not hs, (len(qs), len(os_), len(hs))
    elif order == "coarse":
        s += [K(0, j) for j in range(8)] + [Q(1, 0), Q(1, 1)] + [V(0, j) for j in range(8)] + [Q(1, j) for j in range(2, 10)]
        for u in (1, 2):
            s += [O(u - 1, 0), O(u - 1, 1)] + [K(u, j) for j in range(8)] + [O(u - 1, j) for j in range(2, 10)]
            s += [V(u, j) for j in range(8)] + [Q(u + 1, j) for j in range(10)]
        s += [O(2, 0), O(2, 1)] + [K(3, j) for j in range(8)] + [O(2, j) for j in range(2, 10)]
        s += [V(3, j) for j in range(8)]
    elif order == "pair":
        s += [K(0, j) for j in range(8)] + [Q(1, 0), Q(1, 1)]
        for p in range(3):
            s += [V(0, 2 * p), V(0, 2 * p + 1), Q(1, 2 * p + 2), Q(1, 2 * p + 3)]
        s += [V(0, 6), V(0, 7), Q(1, 8), Q(1, 9)]
        for u in (1, 2, 3):
            s += [O(u - 1, 0), O(u - 1, 1)]
            for p in range(4):
                s += [K(u, 2 * p), K(u, 2 * p + 1), O(u - 1, 2 * p + 2), O(u - 1, 2 * p + 3)]
            if u < 3:
                for p in range(4):
                    s += [V(u, 2 * p), V(u, 2 * p + 1), Q(u + 1, 2 * p), Q(u + 1, 2 * p + 1)]
                s += [Q(u + 1, 8), Q(u + 1, 9)]
            else:
                s += [V(3, j) for j in range(8)]
    s += [N] + [O(3, j) for j in range(10)] + [N]
    return s


def dma_tile(cfg, ent, k):
    ty, u, j = ent
    if cfg["dbg"] and "wsame" in cfg["dbg"] and ty in "QO":
        u = 0
    if cfg["dbg"] and "hsame" in cfg["dbg"] and ty in "KV":
        u, j = 0, 0
    slot = SLOT0 + (k % 4) * SLOTSZ
    g = []
    ntw = cfg["nt_w"] if j >= cfg["ntfirst"] else "nt"

    def ld(vo, srd, so, m0c, imm, fl):
        off = f" offset:{imm}" if imm else ""
        fl = f" {fl}" if fl else ""
        return [salu(f"s_add_u32 m0, s{S_W2K}, {m0c}", ["m0"], [f"s{S_W2K}"]),
                I(f"buffer_load_dwordx4 v{vo}, s[{srd}:{srd + 3}], s{so} offen{off}{fl} lds", "dma",
                  [f"v{vo}", f"s{so}", "m0"], [], 12, tag=k)]

    if ty in "KVQ":
        if ty == "Q":
            pre = salu(f"s_add_u32 s{ST}, s{TB1 + j}, {u * 384}", [f"s{ST}"])
            vo, srd, fl = VWQ, SWQ, ntw
        else:
            pre = salu(f"s_mov_b32 s{ST}, {u * 196608 + j * 24576}", [f"s{ST}"])
            vo, srd, fl = VKV, (SK if ty == "K" else SV), cfg["nt_kv"]
        if ty == "Q":
            for par in range(2):
                g.append(ld(VXO + par, SX, TB2 + j, XP0 + (k % 4) * XPSZ + par * 1024, 0, cfg["nt_x"]))
        first = True
        for par in range(2):
            for cb in range(3):
                x = ld(vo + par, srd, ST, slot + (8 * cb + par) * 1024 - 128 * cb, 128 * cb, fl)
                if first:
                    x = [pre] + x
                    first = False
                g.append(x)
    else:
        for i in range(3):
            pre = salu(f"s_add_u32 s{ST}, s{TB2 + j}, {u * 245760 + 81920 * i}", [f"s{ST}"])
            for par in range(2):
                x = ld(VXO + par, SWO, ST, slot + (8 * i + par) * 1024, 0, ntw)
                g.append(([pre] if par == 0 else []) + x)
    return g


def addr_setup(ent, k):
    ty = ent[0]
    slot = SLOT0 + (k % 4) * SLOTSZ
    r = []
    if ty in "KQ":
        sreg, base = (S_KH, slot) if ty == "K" else (S_QH, XP0 + (k % 4) * XPSZ)
        r.append(salu(f"s_add_u32 s{ST + 1}, s{sreg}, {base}", [f"s{ST + 1}"]))
        r.append(valu(f"v_add_u32 v{AB}, s{ST + 1}, v{RB}", [f"v{AB}"], [f"v{RB}"]))
        r.append(valu(f"v_xor_b32 v{AB + 1}, 32, v{AB}", [f"v{AB + 1}"], [f"v{AB}"]))
        r.append(valu(f"v_xor_b32 v{AB + 2}, 64, v{AB}", [f"v{AB + 2}"], [f"v{AB}"]))
        r.append(valu(f"v_xor_b32 v{AB + 3}, 64, v{AB + 1}", [f"v{AB + 3}"], [f"v{AB + 1}"]))
    if ty in "VQO":
        r.append(valu(f"v_add_u32 v{AT}, {slot}, v{TRB}", [f"v{AT}"], [f"v{TRB}"]))
        r.append(valu(f"v_xor_b32 v{AT + 1}, 16, v{AT}", [f"v{AT + 1}"], [f"v{AT}"]))
    return r


def tile_ops(ent, k, oreg):
    ty, u, j = ent
    m0idx = 12 * k
    mf, rg = [], []
    for m in range(12):
        p = POOL + 4 * ((m0idx + m) % 8)
        rd = []
        if ty == "K":
            if j == 0:
                rd.append(ds_rd("ds_read_b128", "a", QF + 4 * m, 4, XR, QX0 + 8192 * (m >> 2) + 1024 * (m & 3)))
            rd.append(ds_rd("ds_read_b128", "v", p, 4, AB + (m & 3), 8192 * (m >> 2)))
            mf.append(mfma("v", S0 + 16 * j, "v", p, "a", QF + 4 * m, m == 0))
        elif ty == "O":
            if j == 0:
                rd.append(ds_rd("ds_read_b128", "a", OA + 4 * m, 4, XR, oreg[u][m >> 2] + 1024 * (m & 3)))
            for e in range(2):
                rd.append(ds_rd("ds_read_b64_tr_b16", "v", p + 2 * e, 2, AT + e, 2048 * m + 512 * e))
            mf.append(mfma("a", OUT + 16 * j, "v", p, "a", OA + 4 * m, u == 0 and m == 0))
        else:
            t4, dt = divmod(m, 3)
            if dt == 0:
                if ty == "V":
                    rd.append(ds_rd("ds_read_b128", "v", S0 + 16 * j + 4 * t4, 4, XR, XP0 + (k % 4) * XPSZ + 1024 * t4))
                else:
                    rd.append(ds_rd("ds_read_b128", "v", XF + 4 * t4, 4, AB + t4, 0))
            for e in range(2):
                rd.append(ds_rd("ds_read_b64_tr_b16", "v", p + 2 * e, 2, AT + e, (8 * dt + 2 * t4) * 1024 + 512 * e))
            if ty == "V":
                mf.append(mfma("a", OA + 16 * dt, "v", p, "v", S0 + 16 * j + 4 * t4, j == 0 and t4 == 0))
            else:
                mf.append(mfma("v", QA + 16 * dt, "v", p, "v", XF + 4 * t4, j == 0 and t4 == 0))
        rg.append(rd)
    return mf, rg


def v(n):
    return f"v{n}"


def task_max(j):
    s = S0 + 16 * j
    r = []
    if j == 0:
        r.append(valu(f"v_max3_f32 v{VM}, v{s}, v{s + 1}, v{s + 2}", [v(VM)], rr("v", s, 3)))
        for i in range(3, 15, 2):
            r.append(valu(f"v_max3_f32 v{VM}, v{VM}, v{s + i}, v{s + i + 1}", [v(VM)], [v(VM)] + rr("v", s + i, 2)))
        r.append(valu(f"v_max_f32 v{VM}, v{VM}, v{s + 15}", [v(VM)], [v(VM), v(s + 15)]))
    else:
        for i in range(0, 16, 2):
            r.append(valu(f"v_max3_f32 v{VM}, v{VM}, v{s + i}, v{s + i + 1}", [v(VM)], [v(VM)] + rr("v", s + i, 2)))
    return r


def cross_half(reg, op, off):
    return [valu(f"v_mov_b32 v{T0}, v{reg}", [v(T0)], [v(reg)]),
            I(f"v_permlane32_swap_b32 v{T0}, v{reg}", "perm", [v(T0), v(reg)], [v(T0), v(reg)]),
            valu(f"{op} v{reg}, v{reg}, v{T0}", [v(reg)], [v(reg), v(T0)]),
            ds_wr("ds_write_b32", XW, "v", reg, 1, off)]


def task_maxr():
    return [ds_rd("ds_read_b32", "v", T1, 1, XR, MXO), ds_rd("ds_read_b32", "v", T2, 1, XR, MXO + 2048),
            valu(f"v_max_f32 v{T1}, v{T1}, v{T2}", [v(T1)], [v(T1), v(T2)]),
            valu(f"v_mul_f32 v{VMC}, s{S_C}, v{T1}", [v(VMC)], [v(T1)])]


def task_p(j, pbase):
    s = S0 + 16 * j
    r = []
    fma = lambda i: valu(f"v_fma_f32 v{s + i}, v{s + i}, s{S_C}, -v{VMC}", [v(s + i)], [v(s + i), v(VMC)])
    ex = lambda i: trans(f"v_exp_f32 v{s + i}, v{s + i}", [v(s + i)], [v(s + i)])

    def add(i):
        l = VL0 + (i & 1)
        if j == 0 and i < 2:
            return valu(f"v_mov_b32 v{l}, v{s + i}", [v(l)], [v(s + i)])
        return valu(f"v_add_f32 v{l}, v{l}, v{s + i}", [v(l)], [v(l), v(s + i)])

    cvt = lambda kk: valu(f"v_cvt_pk_bf16_f32 v{s + kk}, v{s + 2 * kk}, v{s + 2 * kk + 1}", [v(s + kk)], rr("v", s + 2 * kk, 2))
    r += [fma(0), fma(1)]
    for kk in range(8):
        r += [ex(2 * kk), ex(2 * kk + 1)]
        if kk < 7:
            r += [fma(2 * kk + 2), fma(2 * kk + 3)]
        r += [add(2 * kk), add(2 * kk + 1), cvt(kk)]
        if kk in (3, 7):
            a = kk >> 2
            r.append(ds_wr("ds_write_b128", XW, "v", s + 4 * a, 4, pbase + 1024 * a))
    return r


def task_lx():
    return [valu(f"v_add_f32 v{VL0}, v{VL0}, v{VL1}", [v(VL0)], [v(VL0), v(VL1)])] + cross_half(VL0, "v_add_f32", LXO)


def task_onorm(oreg):
    pre = [ds_rd("ds_read_b32", "v", T1, 1, XR, LXO), ds_rd("ds_read_b32", "v", T2, 1, XR, LXO + 2048),
           valu(f"v_add_f32 v{T1}, v{T1}, v{T2}", [v(T1)], [v(T1), v(T2)]),
           trans(f"v_rcp_f32 v{T3}, v{T1}", [v(T3)], [v(T1)])]
    r = []
    for dt in range(3):
        s = S0 + 16 * (4 + dt)
        for a in range(2):
            for i in range(8 * a, 8 * a + 8):
                r.append(valu(f"v_accvgpr_read_b32 v{s + i}, a{OA + 16 * dt + i}", [v(s + i)], [f"a{OA + 16 * dt + i}"]))
            for i in range(8 * a, 8 * a + 8):
                r.append(valu(f"v_mul_f32 v{s + i}, v{s + i}, v{T3}", [v(s + i)], [v(s + i), v(T3)]))
            for kk in range(4):
                d = s + 8 * a + kk
                r.append(valu(f"v_cvt_pk_bf16_f32 v{d}, v{s + 8 * a + 2 * kk}, v{s + 8 * a + 2 * kk + 1}", [v(d)], rr("v", s + 8 * a + 2 * kk, 2)))
            r.append(ds_wr("ds_write_b128", XW, "v", s + 8 * a, 4, oreg[dt] + 1024 * a))
    return pre, r


def task_qcvt():
    c, w = [], []
    for dt in range(3):
        s = QA + 16 * dt
        for a in range(2):
            for kk in range(4):
                d = s + 8 * a + kk
                c.append(valu(f"v_cvt_pk_bf16_f32 v{d}, v{s + 8 * a + 2 * kk}, v{s + 8 * a + 2 * kk + 1}", [v(d)], rr("v", s + 8 * a + 2 * kk, 2)))
            w.append(ds_wr("ds_write_b128", XW, "v", s + 8 * a, 4, QX0 + 8192 * dt + 1024 * a))
    return c, w


def task_out(cfg, j):
    s = S0 + 16 * (j % 4)
    r = [salu(f"s_lshl_b32 s{ST + 2}, s{TB2 + j}, 6", [f"s{ST + 2}"])]
    fl = f" {cfg['st_flags']}" if cfg["st_flags"] else ""
    for a in range(2):
        for i in range(8 * a, 8 * a + 8):
            r.append(valu(f"v_accvgpr_read_b32 v{s + i}, a{OUT + 16 * j + i}", [v(s + i)], [f"a{OUT + 16 * j + i}"]))
        for kk in range(4):
            d = s + 8 * a + kk
            r.append(valu(f"v_cvt_pk_bf16_f32 v{d}, v{s + 8 * a + 2 * kk}, v{s + 8 * a + 2 * kk + 1}", [v(d)], rr("v", s + 8 * a + 2 * kk, 2)))
        off = f" offset:{1024 * a}" if a else ""
        r.append(I(f"buffer_store_dwordx4 v[{s + 8 * a}:{s + 8 * a + 3}], v{VST}, s[{SWS}:{SWS + 3}], s{ST + 2} offen{off}{fl}", "vst",
                   rr("v", s + 8 * a, 4) + [v(VST), f"s{ST + 2}"], [], 12, data=rr("v", s + 8 * a, 4)))
    return r


def setmin(lst, pos):
    for i in lst:
        i.minpos = pos
    return lst


def split(lst, n):
    tot = sum(i.cost for i in lst)
    parts, cur, acc = [], [], 0
    for i in lst:
        if acc + i.cost / 2 > tot * (len(parts) + 1) / n and len(parts) < n - 1:
            parts.append(cur)
            cur = []
        cur.append(i)
        acc += i.cost
    parts.append(cur)
    while len(parts) < n:
        parts.append([])
    return parts


def build_main(cfg):
    seq = cfg.get("seq") or default_seq(cfg["order"])
    n = len(seq)
    idx = {e: i for i, e in enumerate(seq) if e[0] != "N"}
    real = [i for i, e in enumerate(seq) if e[0] != "N"]
    kof = {i: k for k, i in enumerate(real)}
    tasks = [[] for _ in range(n)]
    LATE = 5
    dma_iv = {k: (0 if k < 4 else real[k - 4] + 1) for k in range(len(real))}
    win = [[] for _ in range(4)]
    for k, i in enumerate(real):
        if seq[i][0] == "Q":
            win[k % 4].append((dma_iv[k], i))
    oreg = {}
    owin = {}
    for u in range(4):
        for j in range(8):
            i = idx[("K", u, j)]
            tasks[i + 1] += setmin(task_max(j), LATE)
        i7 = idx[("K", u, 7)]
        tasks[i7 + 1] += setmin(cross_half(VM, "v_max_f32", MXO), LATE)
        iv = [idx[("V", u, j)] for j in range(8)]
        assert iv[0] >= i7 + 3
        tasks[i7 + 2] += task_maxr()
        lo = i7 + 2
        for j in range(8):
            kv = kof[iv[j]]
            lo = max(lo, real[kv - 4] + 1)
            t = task_p(j, XP0 + (kv % 4) * XPSZ) + (task_lx() if j == 7 else [])
            dbg = cfg["dbg"] or ""
            if "noexp" in dbg:
                t = [x for x in t if x.k != "trans"]
            if "nopw" in dbg:
                t = [x for x in t if x.k != "ds_wr"]
            if "nopv" in dbg:
                t = [x for x in t if x.k == "ds_wr"]
            if "nofma" in dbg:
                t = [x for x in t if not x.t.startswith("v_fma")]
            if "nocvt" in dbg:
                t = [x for x in t if not x.t.startswith("v_cvt")]
            parts = split(t, iv[j] - lo)
            for d, p in enumerate(parts):
                tasks[lo + d] += p
            win[kv % 4].append((lo, iv[j]))
            lo = iv[j]
        io0 = idx[("O", u, 0)]
        assert io0 >= iv[7] + 2
        owin[u] = (iv[7] + 1, io0)
        iq9 = idx[("Q", u, 9)]
        ik0 = idx[("K", u, 0)]
        assert ik0 >= iq9 + 2
        c, w = task_qcvt()
        tasks[iq9 + 1] += setmin(c + w, LATE)
        if u > 0:
            assert iq9 + 1 > idx[("K", u - 1, 0)]
            assert idx[("O", u - 1, 9)] < iv[0]
            assert ik0 > idx[("V", u - 1, 7)]
        if u < 3:
            assert idx[("Q", u + 1, 0)] >= iq9 + 2
            assert io0 <= idx[("K", u + 1, 4)]
    for u in range(4):
        a, b = owin[u]
        free = [p for p in range(4) if all(b < c or d < a for c, d in win[p])]
        assert len(free) >= 3, (u, free)
        oreg[u] = [XP0 + p * XPSZ for p in free[:3]]
        for p in free[:3]:
            win[p].append((a, b))
        pre, body = task_onorm(oreg[u])
        parts = split(body, b - a)
        tasks[a] += pre + setmin(parts[0], LATE)
        for d, p in enumerate(parts[1:]):
            tasks[a + 1 + d] += p
    for p in range(4):
        w = sorted(win[p])
        assert all(w[i][1] < w[i + 1][0] for i in range(len(w) - 1)), (p, w)
    for j in range(10):
        tasks[idx[("O", 3, j)] + 1] += setmin(task_out(cfg, j), LATE)

    prog = []
    for k in range(3):
        for g in dma_tile(cfg, seq[real[k]], k):
            prog += g
    prog += addr_setup(seq[0], 0)
    left = []
    for i, ent in enumerate(seq):
        isreal = ent[0] != "N"
        k = kof.get(i)
        if cfg["stamps"]:
            prog += stamp(i)
        prog.append(waitbar(k if isreal else None))
        if isreal:
            mf, rg = tile_ops(ent, k, oreg)
        else:
            mf, rg = [], []
        mlist = left + mf[:9]
        npos = len(mlist) + 1
        fixed = [[] for _ in range(npos)]
        if isreal:
            if left:
                fixed[0] += rg[0] + rg[1]
                for g in range(2, 12):
                    fixed[g - 1] += rg[g]
            else:
                for g in range(5):
                    fixed[0] += rg[g]
                for g in range(5, 12):
                    fixed[g - 4] += rg[g]
        prev_real = i == 0 or seq[i - 1][0] != "N"
        knext = None
        if prev_real:
            kk = (kof[i - 1] + 4) if i > 0 else 3
            if kk < len(real):
                knext = kk
        if knext is not None:
            groups = dma_tile(cfg, seq[real[knext]], knext)
            span = max(npos - 2, 1)
            for gi, g in enumerate(groups):
                pos = min(1 + gi * span // len(groups), npos - 1)
                if any(x.k == "dma" for x in fixed[pos]):
                    fixed[pos] += g
                else:
                    fixed[pos] = g[:-1] + fixed[pos] + g[-1:]
        if i + 1 < n and seq[i + 1][0] != "N":
            fixed[npos - 1] += addr_setup(seq[i + 1], kof[i + 1])
        q = list(tasks[i])
        wr = []
        if cfg["wlast"]:
            wr = [t for t in q if t.k == "ds_wr"]
            q = [t for t in q if t.k != "ds_wr"]
        if not left:
            for t in q:
                t.minpos = 0
        for t in q:
            t.minpos = min(t.minpos, npos - 1)
        tot = sum(x.cost for f in fixed for x in f) + sum(x.cost for x in q)
        budget = max(24.0, tot / max(npos - (cfg["wlast"] if wr else 0), 1))
        for pos in range(npos):
            used = sum(x.cost for x in fixed[pos])
            extra = []
            wpos = max(npos - 1 - cfg["wlast"], 0)
            while q and q[0].minpos <= pos and (used < budget or pos == npos - 1 or (wr and pos >= wpos)):
                x = q.pop(0)
                extra.append(x)
                used += x.cost
            if wr and not q and pos >= wpos:
                extra += wr
                wr = []
            if cfg.get("fine") == i:
                sp = (list(range(4, 24, 2)) + [96, 98, 100])[pos]
                prog.append(I(f"s_memtime s[{sp}:{sp + 1}]", "other"))
            prog += fixed[pos] + extra
            if pos < len(mlist):
                prog.append(mlist[pos])
        assert not q and not wr
        if cfg.get("fine") == i:
            prog.append(I("s_waitcnt lgkmcnt(0)", "other"))
            for pos in range(npos):
                sp = (list(range(4, 24, 2)) + [96, 98, 100])[pos]
                prog.append(I(f"s_sub_u32 s{sp}, s{sp}, s84", "other"))
                prog.append(I(f"v_writelane_b32 v251, s{sp}, {32 + pos}", "other"))
        left = mf[9:]
    assert not left
    return prog, seq


def stamp(i):
    return [I(f"s_memtime s[86:87]", "other"), I("s_waitcnt lgkmcnt(0)", "other"),
            I(f"s_sub_u32 s86, s86, s84", "other"),
            I(f"v_writelane_b32 v{249 + (i >> 6)}, s86, {i & 63}", "other")]


def prologue(cfg, codebytes):
    o = []
    a = o.append
    a("s_cmp_ge_u32 s2, 256")
    a("s_cbranch_scc0 L_main_go")
    a("s_endpgm")
    a("L_main_go:")
    a("s_load_dwordx8 s[4:11], s[0:1], 0")
    a("s_load_dwordx2 s[12:13], s[0:1], 32")
    a("s_load_dwordx2 s[14:15], s[0:1], 40")
    a("s_load_dwordx8 s[16:23], s[0:1], 48")
    a(f"s_load_dwordx2 s[{SWS}:{SWS + 1}], s[0:1], 96")
    if cfg["stamps"]:
        a("s_memtime s[84:85]")
        a("s_memrealtime s[88:89]")
    a("v_lshrrev_b32 v1, 6, v0")
    a("v_and_b32 v2, 63, v0")
    a(f"v_readfirstlane_b32 s{S_WAVE}, v1")
    a("s_and_b32 s90, s2, 7")
    a("s_lshr_b32 s91, s2, 3")
    a("s_and_b32 s92, s91, 15")
    a("s_lshr_b32 s93, s91, 4")
    a(f"s_lshl_b32 s{S_W2K}, s{S_WAVE}, 11")
    a(f"s_lshr_b32 s94, s{S_WAVE}, 1")
    a(f"s_and_b32 s95, s{S_WAVE}, 1")
    a(f"s_lshl_b32 s{S_KH}, s94, 12")
    a(f"s_lshl_b32 s{S_QH}, s95, 12")
    a(f"s_mov_b32 s{S_C}, 0x3dd53b95")
    if cfg["codepf"]:
        per = -(-codebytes // 32 // 16) * 16
        assert per <= 4096
        a(f"s_getpc_b64 s[{SCODE}:{SCODE + 1}]")
        a("L_main_pc:")
        a(f"s_mov_b32 s{SCODE + 2}, L_main_end-L_main_pc")
        a(f"s_mov_b32 s{SCODE + 3}, 0x20000")
        a(f"s_mul_i32 s3, s91, {per}")
        a(f"s_lshl_b32 s96, s{S_WAVE}, 10")
        a(f"s_add_u32 m0, s96, {QX0}")
        a("v_lshlrev_b32 v3, 4, v0")
        a(f"buffer_load_dwordx4 v3, s[{SCODE}:{SCODE + 3}], s3 offen lds")
    if cfg["rot"]:
        a("s_cmp_ge_u32 s92, 10")
        a("s_cselect_b32 s3, 10, 0")
        a("s_sub_u32 s96, s92, s3")
    else:
        a("s_mov_b32 s96, 0")
    for j in range(10):
        a(f"s_lshl_b32 s{TB2 + j}, s96, 7")
        a(f"s_mul_i32 s{TB1 + j}, s96, 786432")
        if j < 9:
            a("s_add_u32 s96, s96, 1")
            a("s_cmp_eq_u32 s96, 10")
            a("s_cselect_b32 s96, 0, s96")
    a("v_lshrrev_b32 v4, 3, v2")
    a("v_bfe_u32 v5, v2, 4, 1")
    a("v_lshlrev_b32 v5, 2, v5")
    a("v_bfe_u32 v6, v2, 5, 1")
    a("v_or_b32 v5, v5, v6")
    a("v_and_b32 v6, 7, v2")
    a("v_xor_b32 v5, v5, v6")
    a("v_lshlrev_b32 v5, 4, v5")
    a("v_xor_b32 v6, 32, v5")
    a(f"s_lshl_b32 s3, s{S_WAVE}, 4")
    a("v_add_u32 v4, s3, v4")
    a("v_add_u32 v7, 8, v4")
    for reg, stride in ((VKV, 384), (VWQ, 12288), (VXO, 1280)):
        a(f"s_movk_i32 s3, {stride}")
        a(f"v_mad_u32_u24 v{reg}, v4, s3, v5")
        a(f"v_mad_u32_u24 v{reg + 1}, v7, s3, v6")
    a("v_and_b32 v4, 19, v2")
    a("v_bfe_u32 v5, v2, 2, 1")
    a("v_lshl_or_b32 v4, v5, 3, v4")
    a("v_bfe_u32 v5, v2, 3, 1")
    a("v_lshl_or_b32 v4, v5, 2, v4")
    a("v_bfe_u32 v5, v4, 1, 1")
    a("v_bfe_u32 v6, v4, 2, 2")
    a("v_lshl_or_b32 v5, v5, 2, v6")
    a("v_lshrrev_b32 v6, 5, v2")
    a("v_xor_b32 v5, v5, v6")
    a("v_lshlrev_b32 v5, 4, v5")
    a(f"v_lshl_or_b32 v{RB}, v4, 7, v5")
    a("v_bfe_u32 v4, v2, 2, 2")
    a("v_lshrrev_b32 v6, 5, v2")
    a("v_lshrrev_b32 v5, 1, v4")
    a("v_lshlrev_b32 v5, 2, v5")
    a("v_lshl_or_b32 v5, v6, 1, v5")
    a("v_bfe_u32 v7, v2, 4, 1")
    a("v_lshlrev_b32 v7, 1, v7")
    a("v_and_b32 v8, 1, v2")
    a("v_or_b32 v7, v7, v8")
    a("s_lshl_b32 s3, s94, 2")
    a("v_or_b32 v7, s3, v7")
    a("v_xor_b32 v5, v5, v7")
    a("v_lshlrev_b32 v5, 4, v5")
    a("v_bfe_u32 v8, v2, 1, 1")
    a("v_lshl_or_b32 v5, v8, 3, v5")
    a("v_lshl_or_b32 v5, v4, 7, v5")
    a(f"v_lshl_or_b32 v{TRB}, v6, 10, v5")
    a("v_lshlrev_b32 v4, 4, v2")
    a("s_lshl_b32 s3, s95, 12")
    a(f"v_add_u32 v{XR}, s3, v4")
    a("s_lshl_b32 s3, s94, 11")
    a(f"v_add_u32 v{XW}, s3, v{XR}")
    a(f"v_add_u32 v{VST}, s{S_W2K}, v4")
    a("s_waitcnt lgkmcnt(0)")
    a("s_cmp_eq_u32 s93, 0")
    for dst, pa, pb in ((SX, 4, 14), (SK, 6, 16), (SV, 8, 18), (SWQ, 10, 20), (SWO, 12, 22)):
        a(f"s_cselect_b32 s{dst}, s{pa}, s{pb}")
        a(f"s_cselect_b32 s{dst + 1}, s{pa + 1}, s{pb + 1}")

    def shift(srd, sreg, size):
        a(f"s_add_u32 s{srd}, s{srd}, s{sreg}")
        a(f"s_addc_u32 s{srd + 1}, s{srd + 1}, 0")
        a(f"s_mov_b32 s{srd + 2}, {size}")
        a(f"s_mov_b32 s{srd + 3}, 0x20000")

    a("s_mul_i32 s3, s92, 81920")
    shift(SX, 3, 81920)
    a("s_mul_i32 s3, s92, 6291456")
    a("s_mul_i32 s96, s90, 786432")
    a("s_add_u32 s3, s3, s96")
    shift(SK, 3, 786432)
    shift(SV, 3, 786432)
    a("s_mul_i32 s3, s90, 1536")
    shift(SWQ, 3, 639 * 12288 + 1536)
    a("s_mul_i32 s3, s90, 983040")
    shift(SWO, 3, 983040)
    a("s_lshl_b32 s3, s91, 3")
    a("s_add_u32 s3, s3, s90")
    a("s_mul_i32 s3, s3, 81920")
    shift(SWS, 3, 81920)
    return o


def stamp_epilogue():
    o = []
    a = o.append
    a("s_waitcnt vmcnt(0)")
    a("s_memrealtime s[86:87]")
    a("s_load_dwordx2 s[4:5], s[0:1], 96")
    a("s_waitcnt lgkmcnt(0)")
    a("v_writelane_b32 v251, s88, 62")
    a("v_writelane_b32 v251, s86, 63")
    a("s_add_u32 s4, s4, 0x4000000")
    a("s_addc_u32 s5, s5, 0")
    a("s_mov_b32 s6, 0x100000")
    a("s_mov_b32 s7, 0x20000")
    a("s_lshl_b32 s3, s2, 2")
    a(f"s_add_u32 s3, s3, s{S_WAVE}")
    a("s_mul_i32 s3, s3, 768")
    a(f"v_lshrrev_b32 v4, 2, v{XR}")
    a("v_and_b32 v4, 255, v4")
    a("buffer_store_dword v249, v4, s[4:7], s3 offen")
    a("buffer_store_dword v250, v4, s[4:7], s3 offen offset:256")
    a("buffer_store_dword v251, v4, s[4:7], s3 offen offset:512")
    return o


def reduce_kernel(name):
    o = []
    a = o.append
    a(".p2align 8")
    a(f".type {name},@function")
    a(f"{name}:")
    a("s_cmp_ge_u32 s2, 640")
    a("s_cbranch_scc1 L_red_end")
    a("s_load_dwordx2 s[4:5], s[0:1], 96")
    a("s_load_dwordx2 s[8:9], s[0:1], 80")
    a("s_mul_hi_u32 s12, s2, 0x0cccccd0")
    a("s_mul_i32 s13, s12, 20")
    a("s_sub_u32 s13, s2, s13")
    a("s_lshr_b32 s14, s13, 1")
    a("s_and_b32 s15, s13, 1")
    a("v_lshrrev_b32 v1, 3, v0")
    a("v_bfe_u32 v2, v0, 2, 1")
    a("v_bfe_u32 v3, v0, 1, 1")
    a("v_and_b32 v4, 1, v0")
    a("v_lshlrev_b32 v5, 12, v2")
    a("v_lshl_or_b32 v5, v3, 10, v5")
    a("v_lshl_or_b32 v5, v4, 9, v5")
    a("v_lshl_or_b32 v5, v1, 4, v5")
    a("s_mul_i32 s16, s12, 655360")
    a("s_lshl_b32 s17, s14, 13")
    a("s_add_u32 s16, s16, s17")
    a("s_lshl_b32 s17, s15, 11")
    a("s_add_u32 s16, s16, s17")
    a("s_waitcnt lgkmcnt(0)")
    a("s_mov_b32 s6, 20971520")
    a("s_mov_b32 s7, 0x20000")
    a("s_mov_b32 s10, 2621440")
    a("s_mov_b32 s11, 0x20000")
    for j in range(8):
        a(f"buffer_load_dwordx4 v[{16 + 4 * j}:{19 + 4 * j}], v5, s[4:7], s16 offen")
        if j < 7:
            a("s_add_u32 s16, s16, 81920")
    a("v_and_b32 v6, 19, v1")
    a("v_bfe_u32 v7, v1, 2, 1")
    a("v_lshl_or_b32 v6, v7, 3, v6")
    a("v_bfe_u32 v7, v1, 3, 1")
    a("v_lshl_or_b32 v6, v7, 2, v6")
    a("s_movk_i32 s18, 2560")
    a("v_and_b32 v7, 7, v0")
    a("v_lshlrev_b32 v7, 4, v7")
    a("v_mad_u32_u24 v6, v6, s18, v7")
    a("s_and_b32 s19, s12, 15")
    a("s_lshl_b32 s19, s19, 1")
    a("s_add_u32 s19, s19, s15")
    a("s_mul_i32 s19, s19, 81920")
    a("s_lshr_b32 s20, s12, 4")
    a("s_mul_i32 s20, s20, 1280")
    a("s_add_u32 s19, s19, s20")
    a("s_lshl_b32 s20, s14, 7")
    a("s_add_u32 s19, s19, s20")
    a("s_mov_b32 s21, 0xffff0000")
    for j in range(8):
        a(f"s_waitcnt vmcnt({7 - j})")
        for d in range(4):
            src = 16 + 4 * j + d
            if j == 0:
                a(f"v_lshlrev_b32 v{8 + 2 * d}, 16, v{src}")
                a(f"v_and_b32 v{9 + 2 * d}, s21, v{src}")
            else:
                a(f"v_lshlrev_b32 v48, 16, v{src}")
                a(f"v_and_b32 v49, s21, v{src}")
                a(f"v_add_f32 v{8 + 2 * d}, v{8 + 2 * d}, v48")
                a(f"v_add_f32 v{9 + 2 * d}, v{9 + 2 * d}, v49")
    for d in range(4):
        a(f"v_cvt_pk_bf16_f32 v{52 + d}, v{8 + 2 * d}, v{9 + 2 * d}")
    a("buffer_store_dwordx4 v[52:55], v6, s[8:11], s19 offen")
    a("L_red_end:")
    a("s_endpgm")
    return o


def kd(name, nv, acc, ns):
    return [".p2align 6", f".amdhsa_kernel {name}", f"  .amdhsa_next_free_vgpr {nv}", f"  .amdhsa_next_free_sgpr {ns}",
            f"  .amdhsa_accum_offset {acc}", "  .amdhsa_group_segment_fixed_size 0", "  .amdhsa_kernarg_size 104",
            "  .amdhsa_user_sgpr_count 2", "  .amdhsa_user_sgpr_kernarg_segment_ptr 1",
            "  .amdhsa_system_sgpr_workgroup_id_x 1", "  .amdhsa_float_denorm_mode_32 3", ".end_amdhsa_kernel"]


def generate(**kw):
    cfg = dict(DEFAULT)
    cfg.update(kw)
    prog, seq = build_main(cfg)
    if cfg["codepf"]:
        prog = [I("", "dma", tag=-1)] + prog
    body, stats = finalize(prog)
    body = [t for t in body if t]
    est = sum(4 if (t.startswith("s_") and not any(x in t for x in ("s_add_u32", "s_mov_b32"))) else 8 for t in body) + 1024
    main = BASE + "_kernel"
    red = "reduce_partials_kernel"
    hdr = open("cdna_kernels/" + BASE + ".s.ref").read().split("\n")
    o = [l for l in hdr if l.startswith(";   offset") or l.startswith("; Kernarg")]
    o.append(f"; @launch kernel={main} grid=(256,1,1) block=(256,1,1) lds=163840")
    o.append(f"; @launch kernel={red} grid=(640,1,1) block=(256,1,1) lds=0")
    o += ['.amdgcn_target "amdgcn-amd-amdhsa--gfx950"', ".text", f".globl {main}", ".p2align 8", f".type {main},@function", f"{main}:"]
    o += prologue(cfg, min(est, 131072))
    o += body
    if cfg["stamps"]:
        o += stamp_epilogue()
    o.append("s_endpgm")
    o.append("L_main_end:")
    o.append(f".globl {red}")
    o += reduce_kernel(red)
    o.append('.section .rodata,"a"')
    o += kd(main, 512, 256, 102)
    o += kd(red, 64, 64, 32)
    return "\n".join(o) + "\n", dict(stats=stats, n=len(body), est=est, seq=seq)


if __name__ == "__main__":
    kw = eval("dict(" + (sys.argv[2] if len(sys.argv) > 2 else "") + ")")
    txt, info = generate(**kw)
    open(sys.argv[1], "w").write(txt)
    print(len(txt), "bytes;", info["n"], "instrs; est code", info["est"], info["stats"])
```

```python
import sys
from asmlib import *

BASE = "concat_heads__gqa_block_cached__gqa_block_cached__near_ridge"

S0 = 0
QA = 128
POOL = 176
XF = 208
VKV3, RBK, TRV, TKV = 220, 221, 222, 223
PFD, PFQ, PFO = 253, 254, 255
VKV, VWQ, VXO = 224, 226, 228
TRB, RB = 230, 231
AB = 232
AT = 236
XR, XW = 238, 239
VM, VMC, VL0, VL1 = 240, 241, 242, 243
T0, T1, T2, T3 = 244, 245, 246, 247
VST = 248
NVGPR = 252
OUT, OA, QF = 0, 160, 208
SK, SV, SWQ, SWO, SX, SWS, SCODE = 24, 28, 32, 36, 40, 44, 80
S_W2K, S_KH, S_QH, S_C = 48, 49, 50, 51
ST = 52
TB1, TB2 = 60, 70
S_WAVE = 58
S_W6K = 57
SRD_O, SRD_F, SRD_D, SRD_P = 4, 8, 12, 16
VRDY = 252
INBOX = 0x1800000
SLOT0, SLOTSZ = 65536, 24576
XP0, XPSZ = 0, 8192
QX0 = 32768
MXO, LXO = 57344, 58368

DEFAULT = dict(nt_kv="nt", nt_w="", nt_x="", st_flags="", rot=1, order="alt", stamps=0, codepf=1, dbg=None, wlast=1, ntfirst=0, fuse=1, iv_ready=30, iv_chk=110, map=1, lin=1, pf=1, pfw=0)


KPH = "Ho Ho Hoo Ho Ho Ho Ho Hoo "
PATS = {
    "uni": "pat:HHqHHqHHqHHqq HHqHHqHqHqHqH " + 2 * "HoHoHooHoHoHooHoHoq HqHqqHqHqHqqHqHqH " + "HoHoHooHoHoHoHoHoo HHHHHHHH",
    "uni2": "pat:HHqHqHqHqHqHHqq HqHqHqHqHqHqHqH " + KPH + "HqHqHqHqHqHqHqHq " + "HHoHooHoHoHooHoHoo " + "HqHqHqHqHqHqqHqH " + KPH + "HHHHHHHH",
}


TAIL3 = KPH + "HqHqHqHqqHqHqHqHq " + "HHoHooHoHoHooHoHoo " + "HqHqqHqHqHqHqqHqH " + KPH + "HHHHHHHH"
PATS["st6"] = "pat:SpSppSppSppSpSppN CHCCHCqCCqq HqHqqHqHqqHqHqHqH " + TAIL3
PATS["st6b"] = "pat:pSpSpSpSpSpSppppN CHCCHCqCCqq HqHqqHqHqqHqHqHqH " + TAIL3
VQ10 = "HqHqqHqHqHqqHqHqqH "
TAIL4 = KPH + VQ10 + KPH + VQ10 + KPH + "HHHHHHHH"
PATS["sv6"] = "pat:SpSppSppSppSpSppN CHCHCCCCNN HqHqqHqHqHqqHqHqqH " + TAIL4
PATS["sv6b"] = "pat:SpSpSpSpSpSpppppN CHCHCCCCNN HqHqqHqHqHqqHqHqqH " + TAIL4
PATS["sv6c"] = "pat:ppSpSpSpSppSpSppN CHCHCCCCNN HqHqqHqHqHqqHqHqqH " + TAIL4
PATS["st4"] = "pat:SppSpppSppSpppN CHCHCHqCHqqq HqHqHqHqqHqHqHqH " + TAIL3


def default_seq(order):
    order = PATS.get(order, order)
    Q = lambda u, j: ("Q", u, j)
    K = lambda u, j: ("K", u, j)
    V = lambda u, j: ("V", u, j)
    O = lambda u, j: ("O", u, j)
    N = ("N", 0, 0)
    own_head = "p" in order[4:] and order.startswith("pat:")
    s = [] if own_head else [Q(0, j) for j in range(10)] + [N]
    if order == "alt":
        s += [K(0, j) for j in range(8)] + [Q(1, 0), Q(1, 1)]
        for j in range(6):
            s += [V(0, j), Q(1, j + 2)]
        s += [V(0, 6), V(0, 7), Q(1, 8), Q(1, 9)]
        for u in (1, 2):
            s += [O(u - 1, 0), O(u - 1, 1)]
            for j in range(8):
                s += [K(u, j), O(u - 1, j + 2)]
            for j in range(8):
                s += [Q(u + 1, j), V(u, j)]
            s += [Q(u + 1, 8), Q(u + 1, 9)]
        s += [O(2, 0), O(2, 1)]
        for j in range(6):
            s += [K(3, j), O(2, j + 2)]
        s += [K(3, 6), K(3, 7), O(2, 8), O(2, 9)]
        s += [V(3, j) for j in range(8)]
    elif order.startswith("pat:"):
        qs = [Q(u, j) for u in (1, 2, 3) for j in range(10)]
        os_ = [O(u, j) for u in (0, 1, 2) for j in range(10)]
        hs = [f(u, j) for u in range(4) for f in (K, V) for j in range(8)]
        ps = [Q(0, j) for j in range(10)]
        st = []
        for ch in order[4:]:
            if ch == "p":
                s.append(ps.pop(0))
            elif ch == "N":
                s.append(N)
            elif ch == "S":
                e = hs.pop(0)
                st.append(e)
                s.append(("S",) + e[1:])
            elif ch == "C":
                s.append(("C",) + st.pop(0)[1:])
            elif ch == "H":
                s.append(hs.pop(0))
            elif ch == "q":
                s.append(qs.pop(0))
            elif ch == "o":
                s.append(os_.pop(0))
        assert not qs and not os_ and not hs, (len(qs), len(os_), len(hs))
    elif order == "coarse":
        s += [K(0, j) for j in range(8)] + [Q(1, 0), Q(1, 1)] + [V(0, j) for j in range(8)] + [Q(1, j) for j in range(2, 10)]
        for u in (1, 2):
            s += [O(u - 1, 0), O(u - 1, 1)] + [K(u, j) for j in range(8)] + [O(u - 1, j) for j in range(2, 10)]
            s += [V(u, j) for j in range(8)] + [Q(u + 1, j) for j in range(10)]
        s += [O(2, 0), O(2, 1)] + [K(3, j) for j in range(8)] + [O(2, j) for j in range(2, 10)]
        s += [V(3, j) for j in range(8)]
    elif order == "pair":
        s += [K(0, j) for j in range(8)] + [Q(1, 0), Q(1, 1)]
        for p in range(3):
            s += [V(0, 2 * p), V(0, 2 * p + 1), Q(1, 2 * p + 2), Q(1, 2 * p + 3)]
        s += [V(0, 6), V(0, 7), Q(1, 8), Q(1, 9)]
        for u in (1, 2, 3):
            s += [O(u - 1, 0), O(u - 1, 1)]
            for p in range(4):
                s += [K(u, 2 * p), K(u, 2 * p + 1), O(u - 1, 2 * p + 2), O(u - 1, 2 * p + 3)]
            if u < 3:
                for p in range(4):
                    s += [V(u, 2 * p), V(u, 2 * p + 1), Q(u + 1, 2 * p), Q(u + 1, 2 * p + 1)]
                s += [Q(u + 1, 8), Q(u + 1, 9)]
            else:
                s += [V(3, j) for j in range(8)]
    s += [N] + [O(3, j) for j in range(10)] + [N]
    return s


STASH = [("v", S0 + 80), ("v", S0 + 32), ("a", 0), ("a", 48), ("a", 96), ("a", 144)]


def dma_tile(cfg, ent, k):
    ty, u, j = ent
    if ty == "S":
        ty = "K"
    if cfg["dbg"] and "wsame" in cfg["dbg"] and ty in "QO":
        u = 0
    if cfg["dbg"] and "hsame" in cfg["dbg"] and ty in "KV":
        u, j = 0, 0
    slot = SLOT0 + (k % 4) * SLOTSZ
    g = []
    ntw = cfg["nt_w"] if j >= cfg["ntfirst"] else "nt"

    def ld(vo, srd, so, m0c, imm, fl):
        off = f" offset:{imm}" if imm else ""
        fl = f" {fl}" if fl else ""
        return [salu(f"s_add_u32 m0, s{S_W2K}, {m0c}", ["m0"], [f"s{S_W2K}"]),
                I(f"buffer_load_dwordx4 v{vo}, s[{srd}:{srd + 3}], s{so} offen{off}{fl} lds", "dma",
                  [f"v{vo}", f"s{so}", "m0"], [], 12, tag=k)]

    if ty in "KV" and cfg["lin"]:
        srd = SK if ty == "K" else SV
        fl = f" {cfg['nt_kv']}" if cfg["nt_kv"] else ""
        for jj in range(6):
            x = []
            vo = (VKV, VKV + 1, VKV3)[jj % 3]
            if jj % 3 == 0:
                x.append(salu(f"s_mov_b32 s{ST}, {u * 196608 + j * 24576 + 1024 * jj}", [f"s{ST}"]))
                x.append(salu(f"s_add_u32 m0, s{S_W6K}, {slot + 1024 * jj}", ["m0"], [f"s{S_W6K}"]))
            if jj >= 3:
                x.append(valu(f"v_xor_b32 v{TKV}, 32, v{vo}", [f"v{TKV}"], [f"v{vo}"]))
                vo = TKV
            off = f" offset:{1024 * (jj % 3)}" if jj % 3 else ""
            x.append(I(f"buffer_load_dwordx4 v{vo}, s[{srd}:{srd + 3}], s{ST} offen{off}{fl} lds", "dma",
                       [f"v{vo}", f"s{ST}", "m0"], [], 12, tag=k))
            g.append(x)
    elif ty in "KVQ":
        if ty == "Q":
            pre = salu(f"s_add_u32 s{ST}, s{TB1 + j}, {u * 384}", [f"s{ST}"])
            vo, srd, fl = VWQ, SWQ, ntw
        else:
            pre = salu(f"s_mov_b32 s{ST}, {u * 196608 + j * 24576}", [f"s{ST}"])
            vo, srd, fl = VKV, (SK if ty == "K" else SV), cfg["nt_kv"]
        if ty == "Q":
            for par in range(2):
                g.append(ld(VXO + par, SX, TB2 + j, XP0 + (k % 4) * XPSZ + par * 1024, 0, cfg["nt_x"]))
        first = True
        for par in range(2):
            for cb in range(3):
                x = ld(vo + par, srd, ST, slot + (8 * cb + par) * 1024 - 128 * cb, 128 * cb, fl)
                if first:
                    x = [pre] + x
                    first = False
                g.append(x)
    else:
        for i in range(3):
            pre = salu(f"s_add_u32 s{ST}, s{TB2 + j}, {u * 245760 + 81920 * i}", [f"s{ST}"])
            for par in range(2):
                x = ld(VXO + par, SWO, ST, slot + (8 * i + par) * 1024, 0, ntw)
                g.append(([pre] if par == 0 else []) + x)
    return g


def addr_setup(cfg, ent, k):
    ty = "K" if ent[0] == "S" else ent[0]
    slot = SLOT0 + (k % 4) * SLOTSZ
    r = []
    if ty in "KQ":
        sreg, base = (S_KH, slot) if ty == "K" else (S_QH, XP0 + (k % 4) * XPSZ)
        r.append(salu(f"s_add_u32 s{ST + 1}, s{sreg}, {base}", [f"s{ST + 1}"]))
        rb = RBK if ty == "K" and cfg["lin"] else RB
        r.append(valu(f"v_add_u32 v{AB}, s{ST + 1}, v{rb}", [f"v{AB}"], [f"v{rb}"]))
        r.append(valu(f"v_xor_b32 v{AB + 1}, 32, v{AB}", [f"v{AB + 1}"], [f"v{AB}"]))
        r.append(valu(f"v_xor_b32 v{AB + 2}, 64, v{AB}", [f"v{AB + 2}"], [f"v{AB}"]))
        r.append(valu(f"v_xor_b32 v{AB + 3}, 64, v{AB + 1}", [f"v{AB + 3}"], [f"v{AB + 1}"]))
    if ty in "VQO":
        tb = TRV if ty == "V" and cfg["lin"] else TRB
        r.append(valu(f"v_add_u32 v{AT}, {slot}, v{tb}", [f"v{AT}"], [f"v{tb}"]))
        r.append(valu(f"v_xor_b32 v{AT + 1}, 16, v{AT}", [f"v{AT + 1}"], [f"v{AT}"]))
    return r


def tile_ops(cfg, ent, k, oreg, m0idx, firstk, nx):
    ty, u, j = ent
    mf, rg = [], []
    kcb = 128 if cfg["lin"] else 8192
    for m in range(12):
        p = POOL + 4 * ((m0idx + m) % 8)
        rd = []
        if ty in "KC":
            if firstk:
                rd.append(ds_rd("ds_read_b128", "a", QF + 4 * m, 4, XR, QX0 + 8192 * (m >> 2) + 1024 * (m & 3)))
            if ty == "K":
                rd.append(ds_rd("ds_read_b128", "v", p, 4, AB + (m & 3), kcb * (m >> 2)))
                mf.append(mfma("v", S0 + 16 * j, "v", p, "a", QF + 4 * m, m == 0))
            else:
                mf.append(mfma("v", S0 + 16 * j, STASH[j][0], STASH[j][1] + 4 * m, "a", QF + 4 * m, m == 0))
        elif ty == "S":
            rd.append(ds_rd("ds_read_b128", STASH[j][0], STASH[j][1] + 4 * m, 4, AB + (m & 3), kcb * (m >> 2)))
        elif ty == "O":
            if j == 0:
                rd.append(ds_rd("ds_read_b128", "a", OA + 4 * m, 4, XR, oreg[u][m >> 2] + 1024 * (m & 3)))
            for e in range(2):
                rd.append(ds_rd("ds_read_b64_tr_b16", "v", p + 2 * e, 2, AT + e, 2048 * m + 512 * e))
            mf.append(mfma("a", OUT + 16 * j, "v", p, "a", OA + 4 * m, u == 0 and m == 0))
        else:
            t4, dt = divmod(m, 3)
            if dt == 0:
                if ty == "V":
                    rd.append(ds_rd("ds_read_b128", "v", S0 + 16 * j + 4 * t4, 4, XR, XP0 + (k % 4) * XPSZ + 1024 * t4))
                else:
                    rd.append(ds_rd("ds_read_b128", "v", XF + 4 * ((nx + t4) % 3), 4, AB + t4, 0))
            for e in range(2):
                off = (8 * dt + 2 * t4) * 1024 + 512 * e
                if ty == "V" and cfg["lin"]:
                    off = 6144 * t4 + 1536 * e + 128 * dt
                rd.append(ds_rd("ds_read_b64_tr_b16", "v", p + 2 * e, 2, AT + e, off))
            if ty == "V":
                mf.append(mfma("a", OA + 16 * dt, "v", p, "v", S0 + 16 * j + 4 * t4, j == 0 and t4 == 0))
            else:
                mf.append(mfma("v", QA + 16 * dt, "v", p, "v", XF + 4 * ((nx + t4) % 3), j == 0 and t4 == 0))
        rg.append(rd)
    return mf, rg


def v(n):
    return f"v{n}"


def task_max(j, first):
    s = S0 + 16 * j
    r = []
    if first:
        r.append(valu(f"v_max3_f32 v{VM}, v{s}, v{s + 1}, v{s + 2}", [v(VM)], rr("v", s, 3)))
        for i in range(3, 15, 2):
            r.append(valu(f"v_max3_f32 v{VM}, v{VM}, v{s + i}, v{s + i + 1}", [v(VM)], [v(VM)] + rr("v", s + i, 2)))
        r.append(valu(f"v_max_f32 v{VM}, v{VM}, v{s + 15}", [v(VM)], [v(VM), v(s + 15)]))
    else:
        for i in range(0, 16, 2):
            r.append(valu(f"v_max3_f32 v{VM}, v{VM}, v{s + i}, v{s + i + 1}", [v(VM)], [v(VM)] + rr("v", s + i, 2)))
    return r


def cross_half(reg, op, off):
    return [valu(f"v_mov_b32 v{T0}, v{reg}", [v(T0)], [v(reg)]),
            I(f"v_permlane32_swap_b32 v{T0}, v{reg}", "perm", [v(T0), v(reg)], [v(T0), v(reg)]),
            valu(f"{op} v{reg}, v{reg}, v{T0}", [v(reg)], [v(reg), v(T0)]),
            ds_wr("ds_write_b32", XW, "v", reg, 1, off)]


def task_maxr():
    return [ds_rd("ds_read_b32", "v", T1, 1, XR, MXO), ds_rd("ds_read_b32", "v", T2, 1, XR, MXO + 2048),
            valu(f"v_max_f32 v{T1}, v{T1}, v{T2}", [v(T1)], [v(T1), v(T2)]),
            valu(f"v_mul_f32 v{VMC}, s{S_C}, v{T1}", [v(VMC)], [v(T1)])]


def task_p(j, pbase):
    s = S0 + 16 * j
    r = []
    fma = lambda i: valu(f"v_fma_f32 v{s + i}, v{s + i}, s{S_C}, -v{VMC}", [v(s + i)], [v(s + i), v(VMC)])
    ex = lambda i: trans(f"v_exp_f32 v{s + i}, v{s + i}", [v(s + i)], [v(s + i)])

    def add(i):
        l = VL0 + (i & 1)
        if j == 0 and i < 2:
            return valu(f"v_mov_b32 v{l}, v{s + i}", [v(l)], [v(s + i)])
        return valu(f"v_add_f32 v{l}, v{l}, v{s + i}", [v(l)], [v(l), v(s + i)])

    cvt = lambda kk: valu(f"v_cvt_pk_bf16_f32 v{s + kk}, v{s + 2 * kk}, v{s + 2 * kk + 1}", [v(s + kk)], rr("v", s + 2 * kk, 2))
    r += [fma(0), fma(1)]
    for kk in range(8):
        r += [ex(2 * kk), ex(2 * kk + 1)]
        if kk < 7:
            r += [fma(2 * kk + 2), fma(2 * kk + 3)]
        r += [add(2 * kk), add(2 * kk + 1), cvt(kk)]
        if kk in (3, 7):
            a = kk >> 2
            r.append(ds_wr("ds_write_b128", XW, "v", s + 4 * a, 4, pbase + 1024 * a))
    return r


def task_lx():
    return [valu(f"v_add_f32 v{VL0}, v{VL0}, v{VL1}", [v(VL0)], [v(VL0), v(VL1)])] + cross_half(VL0, "v_add_f32", LXO)


def task_onorm(oreg):
    pre = [ds_rd("ds_read_b32", "v", T1, 1, XR, LXO), ds_rd("ds_read_b32", "v", T2, 1, XR, LXO + 2048),
           valu(f"v_add_f32 v{T1}, v{T1}, v{T2}", [v(T1)], [v(T1), v(T2)]),
           trans(f"v_rcp_f32 v{T3}, v{T1}", [v(T3)], [v(T1)])]
    r = []
    for dt in range(3):
        s = S0 + 16 * (4 + dt)
        for a in range(2):
            for i in range(8 * a, 8 * a + 8):
                r.append(valu(f"v_accvgpr_read_b32 v{s + i}, a{OA + 16 * dt + i}", [v(s + i)], [f"a{OA + 16 * dt + i}"]))
            for i in range(8 * a, 8 * a + 8):
                r.append(valu(f"v_mul_f32 v{s + i}, v{s + i}, v{T3}", [v(s + i)], [v(s + i), v(T3)]))
            for kk in range(4):
                d = s + 8 * a + kk
                r.append(valu(f"v_cvt_pk_bf16_f32 v{d}, v{s + 8 * a + 2 * kk}, v{s + 8 * a + 2 * kk + 1}", [v(d)], rr("v", s + 8 * a + 2 * kk, 2)))
            r.append(ds_wr("ds_write_b128", XW, "v", s + 8 * a, 4, oreg[dt] + 1024 * a))
    return pre, r


def task_qcvt():
    c, w = [], []
    for dt in range(3):
        s = QA + 16 * dt
        for a in range(2):
            for kk in range(4):
                d = s + 8 * a + kk
                c.append(valu(f"v_cvt_pk_bf16_f32 v{d}, v{s + 8 * a + 2 * kk}, v{s + 8 * a + 2 * kk + 1}", [v(d)], rr("v", s + 8 * a + 2 * kk, 2)))
            w.append(ds_wr("ds_write_b128", XW, "v", s + 8 * a, 4, QX0 + 8192 * dt + 1024 * a))
    return c, w


def task_out(cfg, j):
    s = S0 + 16 * (j % 4)
    r = [salu(f"s_lshl_b32 s{ST + 2}, s{TB2 + j}, 6", [f"s{ST + 2}"])]
    fl = f" {cfg['st_flags']}" if cfg["st_flags"] else ""
    for a in range(2):
        for i in range(8 * a, 8 * a + 8):
            r.append(valu(f"v_accvgpr_read_b32 v{s + i}, a{OUT + 16 * j + i}", [v(s + i)], [f"a{OUT + 16 * j + i}"]))
        for kk in range(4):
            d = s + 8 * a + kk
            r.append(valu(f"v_cvt_pk_bf16_f32 v{d}, v{s + 8 * a + 2 * kk}, v{s + 8 * a + 2 * kk + 1}", [v(d)], rr("v", s + 8 * a + 2 * kk, 2)))
        off = f" offset:{1024 * a}" if a else ""
        r.append(I(f"buffer_store_dwordx4 v[{s + 8 * a}:{s + 8 * a + 3}], v{VST}, s[{SWS}:{SWS + 3}], s{ST + 2} offen{off}{fl}", "vst",
                   rr("v", s + 8 * a, 4) + [v(VST), f"s{ST + 2}"], [], 12, data=rr("v", s + 8 * a, 4)))
    return r


def setmin(lst, pos):
    for i in lst:
        i.minpos = pos
    return lst


def split(lst, n):
    tot = sum(i.cost for i in lst)
    parts, cur, acc = [], [], 0
    for i in lst:
        if acc + i.cost / 2 > tot * (len(parts) + 1) / n and len(parts) < n - 1:
            parts.append(cur)
            cur = []
        cur.append(i)
        acc += i.cost
    parts.append(cur)
    while len(parts) < n:
        parts.append([])
    return parts


def build_main(cfg):
    seq = cfg.get("seq") or default_seq(cfg["order"])
    n = len(seq)
    idx = {e: i for i, e in enumerate(seq) if e[0] != "N"}
    real = [i for i, e in enumerate(seq) if e[0] not in "NC"]
    kc = {u: [i for i, e in enumerate(seq) if e[0] in "KC" and e[1] == u] for u in range(4)}
    for j, (pf, base) in enumerate(STASH):
        if ("S", 0, j) in idx and pf == "v":
            for i in kc[0]:
                jj = seq[i][2]
                if base <= S0 + 16 * jj < base + 48:
                    assert i > idx[("C", 0, j)], (j, jj)
    kof = {i: k for k, i in enumerate(real)}
    tasks = [[] for _ in range(n)]
    LATE = 5
    dma_iv = {k: (0 if k < 4 else real[k - 4] + 1) for k in range(len(real))}
    win = [[] for _ in range(4)]
    for k, i in enumerate(real):
        if seq[i][0] == "Q":
            win[k % 4].append((dma_iv[k], i))
    oreg = {}
    owin = {}
    for u in range(4):
        for i in kc[u]:
            tasks[i + 1] += setmin(task_max(seq[i][2], i == kc[u][0]), LATE)
        i7 = kc[u][-1]
        tasks[i7 + 1] += setmin(cross_half(VM, "v_max_f32", MXO), LATE)
        iv = [idx[("V", u, j)] for j in range(8)]
        assert iv[0] >= i7 + 3
        tasks[i7 + 2] += task_maxr()
        lo = i7 + 2
        for j in range(8):
            kv = kof[iv[j]]
            lo = max(lo, real[kv - 4] + 1)
            t = task_p(j, XP0 + (kv % 4) * XPSZ) + (task_lx() if j == 7 else [])
            dbg = cfg["dbg"] or ""
            if "noexp" in dbg:
                t = [x for x in t if x.k != "trans"]
            if "nopw" in dbg:
                t = [x for x in t if x.k != "ds_wr"]
            if "nopv" in dbg:
                t = [x for x in t if x.k == "ds_wr"]
            if "nofma" in dbg:
                t = [x for x in t if not x.t.startswith("v_fma")]
            if "nocvt" in dbg:
                t = [x for x in t if not x.t.startswith("v_cvt")]
            parts = split(t, iv[j] - lo)
            for d, p in enumerate(parts):
                tasks[lo + d] += p
            win[kv % 4].append((lo, iv[j]))
            lo = iv[j]
        io0 = idx[("O", u, 0)]
        assert io0 >= iv[7] + 2
        owin[u] = (iv[7] + 1, io0)
        iq9 = idx[("Q", u, 9)]
        ik0 = kc[u][0]
        assert ik0 >= iq9 + 2
        c, w = task_qcvt()
        tasks[iq9 + 1] += setmin(c + w, LATE)
        if u > 0:
            assert iq9 + 1 > kc[u - 1][0]
            assert idx[("O", u - 1, 9)] < iv[0]
            assert ik0 > idx[("V", u - 1, 7)]
        if u < 3:
            assert idx[("Q", u + 1, 0)] >= iq9 + 2
            assert io0 <= idx[("K", u + 1, 4)]
    for u in range(4):
        a, b = owin[u]
        free = [p for p in range(4) if all(b < c or d < a for c, d in win[p])]
        assert len(free) >= 3, (u, free)
        oreg[u] = [XP0 + p * XPSZ for p in free[:3]]
        for p in free[:3]:
            win[p].append((a, b))
        pre, body = task_onorm(oreg[u])
        parts = split(body, b - a)
        tasks[a] += pre + setmin(parts[0], LATE)
        for d, p in enumerate(parts[1:]):
            tasks[a + 1 + d] += p
    for p in range(4):
        w = sorted(win[p])
        assert all(w[i][1] < w[i + 1][0] for i in range(len(w) - 1)), (p, w)
    for j in range(10):
        tasks[idx[("O", 3, j)] + 1] += setmin(task_out(cfg, j), LATE)

    prog = []
    for k in range(3):
        for g in dma_tile(cfg, seq[real[k]], k):
            prog += g
    prog += addr_setup(cfg, seq[0], 0)
    left = []
    npool = 0
    nx = 0
    for i, ent in enumerate(seq):
        isreal = ent[0] not in "NC"
        k = kof.get(i)
        if cfg["stamps"]:
            prog += stamp(i)
        prog.append(waitbar(k if isreal else None))
        if cfg["fuse"] and i == cfg["iv_ready"]:
            prog += ready_add()
        if cfg["fuse"] and i == cfg["iv_chk"]:
            prog += ready_load()
        if ent[0] != "N":
            mf, rg = tile_ops(cfg, ent, k, oreg, npool, ent[0] in "KC" and i == kc[ent[1]][0], nx)
            if ent[0] in "QKVO":
                npool += 12
            if ent[0] == "Q":
                nx += 4
        else:
            mf, rg = [], []
        mlist = left + mf[:9]
        npos = len(mlist) + 1
        fixed = [[] for _ in range(npos)]
        if ent[0] == "S":
            for g in range(12):
                fixed[min(g // 6, npos - 1)] += rg[g]
        elif ent[0] != "N":
            if left:
                fixed[0] += rg[0] + rg[1]
                for g in range(2, 12):
                    fixed[g - 1] += rg[g]
            else:
                for g in range(5):
                    fixed[0] += rg[g]
                for g in range(5, 12):
                    fixed[g - 4] += rg[g]
        prev_real = i == 0 or seq[i - 1][0] not in "NC"
        knext = None
        if prev_real:
            kk = (kof[i - 1] + 4) if i > 0 else 3
            if kk < len(real):
                knext = kk
        if knext is not None:
            groups = dma_tile(cfg, seq[real[knext]], knext)
            if cfg["pfw"]:
                kp = knext + cfg["pfw"]
                if kp < len(real) and seq[real[kp]][0] in "QO" and seq[real[kp]][2] == 0 and seq[real[kp]][:2] != ("Q", 0):
                    ty, u = seq[real[kp]][:2]
                    vo, srd, so = (PFQ, SWQ, u * 384) if ty == "Q" else (PFO, SWO, u * 245760)
                    groups.append([salu(f"s_mov_b32 s{ST + 3}, {so}", [f"s{ST + 3}"]),
                                   I(f"buffer_load_dword v{PFD}, v{vo}, s[{srd}:{srd + 3}], s{ST + 3} offen", "dma",
                                     [f"v{vo}", f"s{ST + 3}"], [], 12, tag=knext)])
            span = max(npos - 2, 1)
            for gi, g in enumerate(groups):
                pos = min(1 + gi * span // len(groups), npos - 1)
                if any(x.k == "dma" for x in fixed[pos]):
                    fixed[pos] += g
                else:
                    fixed[pos] = g[:-1] + fixed[pos] + g[-1:]
        if i + 1 < n and seq[i + 1][0] not in "NC":
            fixed[npos - 1] += addr_setup(cfg, seq[i + 1], kof[i + 1])
        q = list(tasks[i])
        wr = []
        if cfg["wlast"]:
            wr = [t for t in q if t.k == "ds_wr"]
            q = [t for t in q if t.k != "ds_wr"]
        if not left:
            for t in q:
                t.minpos = 0
        for t in q:
            t.minpos = min(t.minpos, npos - 1)
        tot = sum(x.cost for f in fixed for x in f) + sum(x.cost for x in q)
        budget = max(24.0, tot / max(npos - (cfg["wlast"] if wr else 0), 1))
        for pos in range(npos):
            used = sum(x.cost for x in fixed[pos])
            extra = []
            wpos = max(npos - 1 - cfg["wlast"], 0)
            while q and q[0].minpos <= pos and (used < budget or pos == npos - 1 or (wr and pos >= wpos)):
                x = q.pop(0)
                extra.append(x)
                used += x.cost
            if wr and not q and pos >= wpos:
                extra += wr
                wr = []
            if cfg.get("fine") == i:
                sp = (list(range(4, 24, 2)) + [96, 98, 100])[pos]
                prog.append(I(f"s_memtime s[{sp}:{sp + 1}]", "other"))
            prog += fixed[pos] + extra
            if pos < len(mlist):
                prog.append(mlist[pos])
        assert not q and not wr
        if cfg.get("fine") == i:
            prog.append(I("s_waitcnt lgkmcnt(0)", "other"))
            for pos in range(npos):
                sp = (list(range(4, 24, 2)) + [96, 98, 100])[pos]
                prog.append(I(f"s_sub_u32 s{sp}, s{sp}, s84", "other"))
                prog.append(I(f"v_writelane_b32 v251, s{sp}, {32 + pos}", "other"))
        left = mf[9:]
    assert not left
    return prog, seq


def raw(lines):
    return [I(t, "other") for t in lines]


def wave0(label, lines):
    return raw([f"s_cmp_eq_u32 s{S_WAVE}, 0", f"s_cbranch_scc0 {label}"] + lines + [f"{label}:"])


def ready_add():
    return wave0("L_rdy_skip", ["s_mov_b64 exec, 1", f"v_mov_b32 v{T0}, 1", f"v_mov_b32 v{VRDY}, 0",
                                f"buffer_atomic_add v{T0}, v{VRDY}, s[{SRD_D}:{SRD_D + 3}], 0 offen sc1",
                                "s_mov_b64 exec, -1"])


def ready_load():
    return wave0("L_chk_skip", [f"v_mov_b32 v{T0}, 0",
                                f"buffer_load_dword v{VRDY}, v{T0}, s[{SRD_D}:{SRD_D + 3}], 0 offen sc1"])


def final_reduce(cfg):
    o = []
    a = o.append

    def rt(n):
        if cfg["stamps"]:
            a("s_memrealtime s[86:87]")
            a("s_waitcnt lgkmcnt(0)")
            a(f"v_writelane_b32 v251, s86, {n}")

    rt(50)
    a("s_waitcnt vmcnt(0)")
    rt(51)
    a("s_barrier")
    a(f"s_cmp_eq_u32 s{S_WAVE}, 0")
    a("s_cbranch_scc0 L_sig_skip")
    a("s_mov_b32 s21, 0")
    a("L_rdy_loop:")
    a(f"v_readfirstlane_b32 s20, v{VRDY}")
    a("s_add_u32 s21, s21, 1")
    a("s_cmp_ge_u32 s21, 0x40000")
    a("s_cbranch_scc1 L_rdy_ok")
    a("s_cmp_eq_u32 s20, 8")
    a("s_cbranch_scc1 L_rdy_ok")
    a(f"v_mov_b32 v{T0}, 0")
    a(f"buffer_load_dword v{VRDY}, v{T0}, s[{SRD_D}:{SRD_D + 3}], 0 offen sc1")
    a("s_waitcnt vmcnt(0)")
    a("s_branch L_rdy_loop")
    a("L_rdy_ok:")
    a("s_lshl_b32 s20, 1, s90")
    a(f"v_lshrrev_b32 v{T1}, 4, v{VST}")
    a(f"v_lshlrev_b32 v{T1}, 7, v{T1}")
    a(f"v_mov_b32 v{T0}, s20")
    a("s_mov_b64 exec, 0xff")
    a(f"buffer_atomic_add v{T0}, v{T1}, s[{SRD_F}:{SRD_F + 3}], 0 offen sc1")
    a("s_mov_b64 exec, -1")
    a("L_sig_skip:")
    a(f"v_lshrrev_b32 v100, 4, v{XR}")
    a("v_and_b32 v100, 63, v100")
    a("v_lshrrev_b32 v101, 3, v100")
    a("s_and_b32 s20, s90, 3")
    a("s_lshl_b32 s20, s20, 3")
    a("v_add_u32 v101, s20, v101")
    a("v_bfe_u32 v102, v100, 2, 1")
    a("v_lshlrev_b32 v102, 12, v102")
    a("v_bfe_u32 v103, v100, 1, 1")
    a("v_lshl_or_b32 v102, v103, 10, v102")
    a("v_and_b32 v103, 1, v100")
    a("v_lshl_or_b32 v102, v103, 9, v102")
    a("v_lshl_or_b32 v102, v101, 4, v102")
    a("v_and_b32 v103, 19, v101")
    a("v_bfe_u32 v104, v101, 2, 1")
    a("v_lshl_or_b32 v103, v104, 3, v103")
    a("v_bfe_u32 v104, v101, 3, 1")
    a("v_lshl_or_b32 v103, v104, 2, v103")
    a("s_movk_i32 s20, 2560")
    a("v_and_b32 v104, 7, v100")
    a("v_lshlrev_b32 v104, 4, v104")
    a("v_mad_u32_u24 v103, v103, s20, v104")
    a("s_lshr_b32 s22, s90, 2")
    a("s_lshl_b32 s23, s22, 11")
    a(f"s_lshl_b32 s20, s{S_WAVE}, 13")
    a("s_add_u32 s23, s23, s20")
    a("s_lshl_b32 s20, s92, 1")
    a("s_add_u32 s22, s22, s20")
    a("s_mul_i32 s22, s22, 81920")
    a("s_mul_i32 s20, s93, 1280")
    a("s_add_u32 s22, s22, s20")
    a(f"s_lshl_b32 s20, s{S_WAVE}, 7")
    a("s_add_u32 s22, s22, s20")
    a("s_lshl_b32 s59, s90, 7")
    a(f"v_mov_b32 v{T0}, 0")
    a("s_mov_b32 s21, 0")
    a("s_mov_b32 s3, 0")
    a("L_poll:")
    a(f"buffer_load_dword v{T1}, v{T0}, s[{SRD_F}:{SRD_F + 3}], s59 offen sc1")
    a("s_add_u32 s21, s21, 1")
    a("s_waitcnt vmcnt(0)")
    a(f"v_readfirstlane_b32 s20, v{T1}")
    a("s_cmp_ge_u32 s21, 0x40000")
    a("s_cselect_b32 s20, 0xff, s20")
    a(f"s_andn2_b32 s{ST + 4}, s20, s3")
    a("s_or_b32 s3, s3, s20")
    for p in range(8):
        a(f"s_bitcmp1_b32 s{ST + 4}, {p}")
        a(f"s_cbranch_scc0 L_nop{p}")
        for ci in range(3):
            r = 32 * ci + 4 * p
            if ci == 2:
                a(f"s_cmp_lt_u32 s{S_WAVE}, 2")
                a(f"s_cbranch_scc0 L_nop{p}")
            a(f"s_add_u32 s20, s23, {ci * 32768 + p * 81920}")
            a(f"buffer_load_dwordx4 v[{r}:{r + 3}], v102, s[{SRD_P}:{SRD_P + 3}], s20 offen sc1")
        a(f"L_nop{p}:")
    a("s_cmp_eq_u32 s3, 0xff")
    a("s_cbranch_scc0 L_poll")
    rt(52)
    if cfg["stamps"]:
        a("v_writelane_b32 v251, s21, 55")
    a("s_mov_b32 s59, 0xffff0000")
    a("s_waitcnt vmcnt(0)")

    def chunk_sum(ci):
        for p in range(8):
            for d in range(4):
                src = 32 * ci + 4 * p + d
                if p == 0:
                    a(f"v_lshlrev_b32 v{108 + 2 * d}, 16, v{src}")
                    a(f"v_and_b32 v{109 + 2 * d}, s59, v{src}")
                else:
                    a(f"v_lshlrev_b32 v116, 16, v{src}")
                    a(f"v_and_b32 v117, s59, v{src}")
                    a(f"v_add_f32 v{108 + 2 * d}, v{108 + 2 * d}, v116")
                    a(f"v_add_f32 v{109 + 2 * d}, v{109 + 2 * d}, v117")
        for d in range(4):
            a(f"v_cvt_pk_bf16_f32 v{120 + 4 * (ci & 1) + d}, v{108 + 2 * d}, v{109 + 2 * d}")
        off = f" offset:{512 * ci}" if ci else ""
        a(f"buffer_store_dwordx4 v[{120 + 4 * (ci & 1)}:{123 + 4 * (ci & 1)}], v103, s[{SRD_O}:{SRD_O + 3}], s22 offen{off}")

    chunk_sum(0)
    chunk_sum(1)
    a(f"s_cmp_lt_u32 s{S_WAVE}, 2")
    a("s_cbranch_scc0 L_fin")
    chunk_sum(2)
    a("L_fin:")
    rt(53)
    return o


def stamp(i):
    return [I(f"s_memtime s[86:87]", "other"), I("s_waitcnt lgkmcnt(0)", "other"),
            I(f"s_sub_u32 s86, s86, s84", "other"),
            I(f"v_writelane_b32 v{249 + (i >> 6)}, s86, {i & 63}", "other")]


def prologue(cfg, codebytes):
    o = []
    a = o.append
    a("s_cmp_ge_u32 s2, 256")
    a("s_cbranch_scc0 L_main_go")
    a("s_endpgm")
    a("L_main_go:")
    a("s_load_dwordx8 s[4:11], s[0:1], 0")
    a("s_load_dwordx2 s[12:13], s[0:1], 32")
    a("s_load_dwordx2 s[14:15], s[0:1], 40")
    a("s_load_dwordx8 s[16:23], s[0:1], 48")
    a(f"s_load_dwordx2 s[{SWS}:{SWS + 1}], s[0:1], 96")
    if cfg["fuse"]:
        a("s_load_dwordx4 s[96:99], s[0:1], 80")
    if cfg["stamps"]:
        a("s_memtime s[84:85]")
        a("s_memrealtime s[88:89]")
    a("v_lshrrev_b32 v1, 6, v0")
    a("v_and_b32 v2, 63, v0")
    a(f"v_readfirstlane_b32 s{S_WAVE}, v1")
    if cfg["map"] == 0:
        a("s_and_b32 s90, s2, 7")
        a("s_lshr_b32 s91, s2, 3")
        a("s_and_b32 s92, s91, 15")
        a("s_lshr_b32 s93, s91, 4")
    else:
        a("s_and_b32 s93, s2, 1")
        a("s_bfe_u32 s92, s2, 0x40003")
        a("s_and_b32 s90, s2, 6")
        a("s_lshr_b32 s3, s2, 7")
        a("s_or_b32 s90, s90, s3")
        a("s_lshl_b32 s91, s93, 4")
        a("s_or_b32 s91, s91, s92")
    a(f"s_lshl_b32 s{S_W2K}, s{S_WAVE}, 11")
    a(f"s_lshr_b32 s94, s{S_WAVE}, 1")
    a(f"s_and_b32 s95, s{S_WAVE}, 1")
    a(f"s_mul_i32 s{S_KH}, s94, {12288 if cfg['lin'] else 4096}")
    a(f"s_mul_i32 s{S_W6K}, s{S_WAVE}, 6144")
    a(f"s_lshl_b32 s{S_QH}, s95, 12")
    a(f"s_mov_b32 s{S_C}, 0x3dd53b95")
    if cfg["codepf"]:
        per = -(-codebytes // 32 // 16) * 16
        assert per <= 4096
        a(f"s_getpc_b64 s[{SCODE}:{SCODE + 1}]")
        a("L_main_pc:")
        a(f"s_mov_b32 s{SCODE + 2}, L_main_end-L_main_pc")
        a(f"s_mov_b32 s{SCODE + 3}, 0x20000")
        a("s_lshr_b32 s3, s2, 3")
        a(f"s_mul_i32 s3, s3, {per}")
        a(f"s_lshl_b32 s59, s{S_WAVE}, 10")
        a(f"s_add_u32 m0, s59, {QX0}")
        a("v_lshlrev_b32 v3, 4, v0")
        a(f"buffer_load_dwordx4 v3, s[{SCODE}:{SCODE + 3}], s3 offen lds")
    if cfg["rot"]:
        a("s_cmp_ge_u32 s92, 10")
        a("s_cselect_b32 s3, 10, 0")
        a("s_sub_u32 s59, s92, s3")
    else:
        a("s_mov_b32 s59, 0")
    for j in range(10):
        a(f"s_lshl_b32 s{TB2 + j}, s59, 7")
        a(f"s_mul_i32 s{TB1 + j}, s59, 786432")
        if j < 9:
            a("s_add_u32 s59, s59, 1")
            a("s_cmp_eq_u32 s59, 10")
            a("s_cselect_b32 s59, 0, s59")
    a("v_lshrrev_b32 v4, 3, v2")
    a("v_bfe_u32 v5, v2, 4, 1")
    a("v_lshlrev_b32 v5, 2, v5")
    a("v_bfe_u32 v6, v2, 5, 1")
    a("v_or_b32 v5, v5, v6")
    a("v_and_b32 v6, 7, v2")
    a("v_xor_b32 v5, v5, v6")
    a("v_lshlrev_b32 v5, 4, v5")
    a("v_xor_b32 v6, 32, v5")
    a(f"s_lshl_b32 s3, s{S_WAVE}, 4")
    a("v_add_u32 v4, s3, v4")
    a("v_add_u32 v7, 8, v4")
    for reg, stride in ((VKV, 384), (VWQ, 12288), (VXO, 1280)):
        a(f"s_movk_i32 s3, {stride}")
        a(f"v_mad_u32_u24 v{reg}, v4, s3, v5")
        a(f"v_mad_u32_u24 v{reg + 1}, v7, s3, v6")
    if cfg["lin"]:
        a("s_movk_i32 s3, 2731")
        for jj, reg in enumerate((VKV, VKV + 1, VKV3)):
            a(f"v_add_u32 v4, {64 * jj}, v2")
            a("v_mul_u32_u24 v4, s3, v4")
            a("v_lshrrev_b32 v4, 16, v4")
            a("v_bfe_u32 v5, v4, 1, 1")
            a("v_bfe_u32 v6, v4, 2, 1")
            a("v_lshl_or_b32 v5, v5, 2, v6")
            a("v_xor_b32 v5, v5, v2")
            a("v_lshlrev_b32 v5, 4, v5")
            a(f"v_add_u32 v{reg}, s{S_W6K}, v5")
    a("v_and_b32 v4, 19, v2")
    a("v_bfe_u32 v5, v2, 2, 1")
    a("v_lshl_or_b32 v4, v5, 3, v4")
    a("v_bfe_u32 v5, v2, 3, 1")
    a("v_lshl_or_b32 v4, v5, 2, v4")
    a("v_bfe_u32 v5, v4, 1, 1")
    a("v_bfe_u32 v6, v4, 2, 2")
    a("v_lshl_or_b32 v5, v5, 2, v6")
    a("v_lshrrev_b32 v6, 5, v2")
    a("v_xor_b32 v5, v5, v6")
    a("v_lshlrev_b32 v5, 4, v5")
    a(f"v_lshl_or_b32 v{RB}, v4, 7, v5")
    a("s_movk_i32 s3, 384")
    a(f"v_mad_u32_u24 v{RBK}, v4, s3, v5")
    a("v_bfe_u32 v4, v2, 2, 2")
    a("v_lshrrev_b32 v6, 5, v2")
    a("v_lshrrev_b32 v5, 1, v4")
    a("v_lshlrev_b32 v5, 2, v5")
    a("v_lshl_or_b32 v5, v6, 1, v5")
    a("v_bfe_u32 v7, v2, 4, 1")
    a("v_lshlrev_b32 v7, 1, v7")
    a("v_and_b32 v8, 1, v2")
    a("v_or_b32 v7, v7, v8")
    a("s_lshl_b32 s3, s94, 2")
    a("v_or_b32 v7, s3, v7")
    a("v_xor_b32 v5, v5, v7")
    a("v_lshlrev_b32 v5, 4, v5")
    a("v_bfe_u32 v8, v2, 1, 1")
    a("v_lshl_or_b32 v5, v8, 3, v5")
    a("v_lshl_or_b32 v7, v6, 3, v4")
    a("s_movk_i32 s3, 384")
    a(f"v_mad_u32_u24 v{TRV}, v7, s3, v5")
    a("v_lshl_or_b32 v5, v4, 7, v5")
    a(f"v_lshl_or_b32 v{TRB}, v6, 10, v5")
    a("v_mul_u32_u24 v4, 43, v2")
    a("v_lshrrev_b32 v4, 7, v4")
    a("v_mul_u32_u24 v5, 3, v4")
    a("v_sub_u32 v5, v2, v5")
    a("v_lshlrev_b32 v5, 7, v5")
    a("s_lshl_b32 s3, s92, 2")
    a(f"s_add_u32 s3, s3, s{S_WAVE}")
    a("s_mul_i32 s59, s3, 10")
    a("v_add_u32 v4, s59, v4")
    a("s_movk_i32 s59, 12288")
    a(f"v_mad_u32_u24 v{PFQ}, v4, s59, v5")
    a("s_mul_i32 s59, s3, 30")
    a("v_add_u32 v4, s59, v2")
    a(f"v_lshlrev_b32 v{PFO}, 7, v4")
    a("v_cmp_gt_u32 vcc, 30, v2")
    a("v_mov_b32 v5, 0x7ffffff0")
    a("s_and_b32 s3, s90, 1")
    a(f"v_cndmask_b32 v{PFQ}, v5, v{PFQ}, vcc")
    a(f"v_cndmask_b32 v{PFO}, v5, v{PFO}, vcc")
    a("s_lshl_b32 s3, s3, 2")
    a(f"s_add_u32 s3, s3, s{S_WAVE}")
    a("s_mul_i32 s3, s3, 80")
    a("v_add_u32 v4, s3, v2")
    a("v_lshlrev_b32 v9, 7, v4")
    a("v_cmp_gt_u32 vcc, 16, v2")
    a("v_add_u32 v10, 8192, v9")
    a("s_nop 0")
    a("v_cndmask_b32 v10, v5, v10, vcc")
    a("v_lshlrev_b32 v4, 4, v2")
    a("s_lshl_b32 s3, s95, 12")
    a(f"v_add_u32 v{XR}, s3, v4")
    a("s_lshl_b32 s3, s94, 11")
    a(f"v_add_u32 v{XW}, s3, v{XR}")
    a(f"v_add_u32 v{VST}, s{S_W2K}, v4")
    a("s_waitcnt lgkmcnt(0)")
    a("s_cmp_eq_u32 s93, 0")
    for dst, pa, pb in ((SX, 4, 14), (SK, 6, 16), (SV, 8, 18), (SWQ, 10, 20), (SWO, 12, 22)):
        a(f"s_cselect_b32 s{dst}, s{pa}, s{pb}")
        a(f"s_cselect_b32 s{dst + 1}, s{pa + 1}, s{pb + 1}")

    def shift(srd, sreg, size):
        a(f"s_add_u32 s{srd}, s{srd}, s{sreg}")
        a(f"s_addc_u32 s{srd + 1}, s{srd + 1}, 0")
        a(f"s_mov_b32 s{srd + 2}, {size}")
        a(f"s_mov_b32 s{srd + 3}, 0x20000")

    a("s_mul_i32 s3, s92, 81920")
    shift(SX, 3, 81920)
    a("s_mul_i32 s3, s92, 6291456")
    a("s_mul_i32 s59, s90, 786432")
    a("s_add_u32 s3, s3, s59")
    shift(SK, 3, 786432)
    shift(SV, 3, 786432)
    a("s_mul_i32 s3, s90, 1536")
    shift(SWQ, 3, 639 * 12288 + 1536)
    a("s_mul_i32 s3, s90, 983040")
    shift(SWO, 3, 983040)
    if cfg["fuse"]:
        for dst in (SRD_F, SRD_P):
            a(f"s_mov_b32 s{dst}, s{SWS}")
            a(f"s_mov_b32 s{dst + 1}, s{SWS + 1}")
        a("s_lshl_b32 s3, s91, 10")
        a(f"s_add_u32 s3, s3, {INBOX}")
        shift(SRD_F, 3, 1024)
        a("s_mul_i32 s3, s91, 655360")
        shift(SRD_P, 3, 655360)
        a(f"s_mov_b32 s{SRD_O}, s96")
        a(f"s_mov_b32 s{SRD_O + 1}, s97")
        a(f"s_mov_b32 s{SRD_O + 2}, 2621440")
        a(f"s_mov_b32 s{SRD_O + 3}, 0x20000")
        a(f"s_mov_b32 s{SRD_D}, s98")
        a(f"s_mov_b32 s{SRD_D + 1}, s99")
        a("s_and_b32 s3, s91, 1")
        a("s_lshl_b32 s3, s3, 7")
        a("s_lshr_b32 s59, s91, 1")
        a("s_lshl_b32 s59, s59, 2")
        a("s_add_u32 s3, s3, s59")
        shift(SRD_D, 3, 4)
    a("s_lshl_b32 s3, s91, 3")
    a("s_add_u32 s3, s3, s90")
    a("s_mul_i32 s3, s3, 81920")
    shift(SWS, 3, 81920)
    if cfg["fuse"]:
        a(f"s_cmp_eq_u32 s{S_WAVE}, 0")
        a("s_cbranch_scc0 L_clr_skip")
        a("s_lshl_b32 s3, s90, 7")
        a(f"v_mov_b32 v{T0}, 0")
        a("s_mov_b64 exec, 1")
        a(f"buffer_store_dword v{T0}, v{T0}, s[{SRD_F}:{SRD_F + 3}], s3 offen sc1")
        a("s_mov_b64 exec, -1")
        a("L_clr_skip:")
        a(f"v_mov_b32 v{VRDY}, 0")
    if cfg["pf"]:
        a(f"buffer_load_dword v{PFD}, v{PFQ}, s[{SWQ}:{SWQ + 3}], 0 offen")
        a(f"buffer_load_dword v{PFD}, v9, s[{SX}:{SX + 3}], 0 offen")
        a(f"buffer_load_dword v{PFD}, v10, s[{SX}:{SX + 3}], 0 offen")
    return o


def stamp_epilogue():
    o = []
    a = o.append
    a("s_waitcnt vmcnt(0)")
    a("s_memrealtime s[86:87]")
    a("s_load_dwordx2 s[4:5], s[0:1], 96")
    a("s_waitcnt lgkmcnt(0)")
    a("v_writelane_b32 v251, s88, 62")
    a("v_writelane_b32 v251, s86, 63")
    a("s_add_u32 s4, s4, 0x4000000")
    a("s_addc_u32 s5, s5, 0")
    a("s_mov_b32 s6, 0x100000")
    a("s_mov_b32 s7, 0x20000")
    a("s_lshl_b32 s3, s2, 2")
    a(f"s_add_u32 s3, s3, s{S_WAVE}")
    a("s_mul_i32 s3, s3, 768")
    a(f"v_lshrrev_b32 v4, 2, v{XR}")
    a("v_and_b32 v4, 255, v4")
    a("buffer_store_dword v249, v4, s[4:7], s3 offen")
    a("buffer_store_dword v250, v4, s[4:7], s3 offen offset:256")
    a("buffer_store_dword v251, v4, s[4:7], s3 offen offset:512")
    return o


def reduce_kernel(name):
    o = []
    a = o.append
    a(".p2align 8")
    a(f".type {name},@function")
    a(f"{name}:")
    a("s_cmp_ge_u32 s2, 640")
    a("s_cbranch_scc1 L_red_end")
    a("s_load_dwordx2 s[4:5], s[0:1], 96")
    a("s_load_dwordx2 s[8:9], s[0:1], 80")
    a("s_mul_hi_u32 s12, s2, 0x0cccccd0")
    a("s_mul_i32 s13, s12, 20")
    a("s_sub_u32 s13, s2, s13")
    a("s_lshr_b32 s14, s13, 1")
    a("s_and_b32 s15, s13, 1")
    a("v_lshrrev_b32 v1, 3, v0")
    a("v_bfe_u32 v2, v0, 2, 1")
    a("v_bfe_u32 v3, v0, 1, 1")
    a("v_and_b32 v4, 1, v0")
    a("v_lshlrev_b32 v5, 12, v2")
    a("v_lshl_or_b32 v5, v3, 10, v5")
    a("v_lshl_or_b32 v5, v4, 9, v5")
    a("v_lshl_or_b32 v5, v1, 4, v5")
    a("s_mul_i32 s16, s12, 655360")
    a("s_lshl_b32 s17, s14, 13")
    a("s_add_u32 s16, s16, s17")
    a("s_lshl_b32 s17, s15, 11")
    a("s_add_u32 s16, s16, s17")
    a("s_waitcnt lgkmcnt(0)")
    a("s_mov_b32 s6, 20971520")
    a("s_mov_b32 s7, 0x20000")
    a("s_mov_b32 s10, 2621440")
    a("s_mov_b32 s11, 0x20000")
    for j in range(8):
        a(f"buffer_load_dwordx4 v[{16 + 4 * j}:{19 + 4 * j}], v5, s[4:7], s16 offen")
        if j < 7:
            a("s_add_u32 s16, s16, 81920")
    a("v_and_b32 v6, 19, v1")
    a("v_bfe_u32 v7, v1, 2, 1")
    a("v_lshl_or_b32 v6, v7, 3, v6")
    a("v_bfe_u32 v7, v1, 3, 1")
    a("v_lshl_or_b32 v6, v7, 2, v6")
    a("s_movk_i32 s18, 2560")
    a("v_and_b32 v7, 7, v0")
    a("v_lshlrev_b32 v7, 4, v7")
    a("v_mad_u32_u24 v6, v6, s18, v7")
    a("s_and_b32 s19, s12, 15")
    a("s_lshl_b32 s19, s19, 1")
    a("s_add_u32 s19, s19, s15")
    a("s_mul_i32 s19, s19, 81920")
    a("s_lshr_b32 s20, s12, 4")
    a("s_mul_i32 s20, s20, 1280")
    a("s_add_u32 s19, s19, s20")
    a("s_lshl_b32 s20, s14, 7")
    a("s_add_u32 s19, s19, s20")
    a("s_mov_b32 s21, 0xffff0000")
    for j in range(8):
        a(f"s_waitcnt vmcnt({7 - j})")
        for d in range(4):
            src = 16 + 4 * j + d
            if j == 0:
                a(f"v_lshlrev_b32 v{8 + 2 * d}, 16, v{src}")
                a(f"v_and_b32 v{9 + 2 * d}, s21, v{src}")
            else:
                a(f"v_lshlrev_b32 v48, 16, v{src}")
                a(f"v_and_b32 v49, s21, v{src}")
                a(f"v_add_f32 v{8 + 2 * d}, v{8 + 2 * d}, v48")
                a(f"v_add_f32 v{9 + 2 * d}, v{9 + 2 * d}, v49")
    for d in range(4):
        a(f"v_cvt_pk_bf16_f32 v{52 + d}, v{8 + 2 * d}, v{9 + 2 * d}")
    a("buffer_store_dwordx4 v[52:55], v6, s[8:11], s19 offen")
    a("L_red_end:")
    a("s_endpgm")
    return o


def kd(name, nv, acc, ns):
    return [".p2align 6", f".amdhsa_kernel {name}", f"  .amdhsa_next_free_vgpr {nv}", f"  .amdhsa_next_free_sgpr {ns}",
            f"  .amdhsa_accum_offset {acc}", "  .amdhsa_group_segment_fixed_size 0", "  .amdhsa_kernarg_size 104",
            "  .amdhsa_user_sgpr_count 2", "  .amdhsa_user_sgpr_kernarg_segment_ptr 1",
            "  .amdhsa_system_sgpr_workgroup_id_x 1", "  .amdhsa_float_denorm_mode_32 3", ".end_amdhsa_kernel"]


def generate(**kw):
    cfg = dict(DEFAULT)
    cfg.update(kw)
    if cfg["fuse"] and "sc1" not in cfg["st_flags"]:
        cfg["st_flags"] = (cfg["st_flags"] + " sc1").strip()
    prog, seq = build_main(cfg)
    prog = [I("", "dma", tag=-1)] * (cfg["codepf"] + 3 * cfg["pf"]) + prog
    body, stats = finalize(prog)
    body = [t for t in body if t]
    est = sum(4 if (t.startswith("s_") and not any(x in t for x in ("s_add_u32", "s_mov_b32"))) else 8 for t in body) + 1024
    main = BASE + "_kernel"
    red = "reduce_partials_kernel"
    hdr = open("cdna_kernels/" + BASE + ".s.ref").read().split("\n")
    o = [l for l in hdr if l.startswith(";   offset") or l.startswith("; Kernarg")]
    if cfg["fuse"]:
        o.append("; @launch grid=(256,1,1) block=(256,1,1) lds=163840")
    else:
        o.append(f"; @launch kernel={main} grid=(256,1,1) block=(256,1,1) lds=163840")
        o.append(f"; @launch kernel={red} grid=(640,1,1) block=(256,1,1) lds=0")
    o += ['.amdgcn_target "amdgcn-amd-amdhsa--gfx950"', ".text", f".globl {main}", ".p2align 8", f".type {main},@function", f"{main}:"]
    o += prologue(cfg, min(est, 131072))
    o += body
    if cfg["fuse"]:
        if cfg["stamps"]:
            o += [x.t for x in stamp(len(seq))]
        o += final_reduce(cfg)
    if cfg["stamps"]:
        o += [x.t for x in stamp(len(seq) + 1)]
        o += stamp_epilogue()
    o.append("s_endpgm")
    o.append("L_main_end:")
    if not cfg["fuse"]:
        o.append(f".globl {red}")
        o += reduce_kernel(red)
    o.append('.section .rodata,"a"')
    o += kd(main, 512, 256, 102)
    if not cfg["fuse"]:
        o += kd(red, 64, 64, 32)
    return "\n".join(o) + "\n", dict(stats=stats, n=len(body), est=est, seq=seq)


if __name__ == "__main__":
    kw = eval("dict(" + (sys.argv[2] if len(sys.argv) > 2 else "") + ")")
    txt, info = generate(**kw)
    open(sys.argv[1], "w").write(txt)
    print(len(txt), "bytes;", info["n"], "instrs; est code", info["est"], info["stats"])
```

```python
import sys
from asmlib import *

BASE = "concat_heads__gqa_block_cached__gqa_block_cached__near_ridge"

S0 = 0
QA = 128
POOL = 176
XF = 208
VKV3, RBK, TRV, TKV = 220, 221, 222, 223
PFD, PFQ, PFO = 253, 254, 255
VKV, VWQ, VXO = 224, 226, 228
TRB, RB = 230, 231
AB = 232
AT = 236
XR, XW = 238, 239
VM, VMC, VL0, VL1 = 240, 241, 242, 243
T0, T1, T2, T3 = 244, 245, 246, 247
VST = 248
NVGPR = 252
OUT, OA, QF = 0, 160, 208
SK, SV, SWQ, SWO, SX, SWS, SCODE = 24, 28, 32, 36, 40, 44, 80
S_W2K, S_KH, S_QH, S_C = 48, 49, 50, 51
ST = 52
TB1, TB2 = 60, 70
S_WAVE = 58
S_W6K = 57
SRD_O, SRD_F, SRD_D, SRD_P = 4, 8, 12, 16
VRDY = 252
INBOX = 0x1800000
SLOT0, SLOTSZ = 65536, 24576
XP0, XPSZ = 0, 8192
QX0 = 32768
MXO, LXO = 57344, 58368

DEFAULT = dict(nt_kv="nt", nt_w="", nt_x="", st_flags="", rot=1, order="uni2", stamps=0, codepf=1, dbg=None, wlast=1, ntfirst=0, fuse=1, iv_ready=30, iv_chk=110, map=1, lin=1, pf=0, pfw=0, dspan=99, dstart=1, early=7, hstr=8)


KPH = "Ho Ho Hoo Ho Ho Ho Ho Hoo "
PATS = {
    "uni": "pat:HHqHHqHHqHHqq HHqHHqHqHqHqH " + 2 * "HoHoHooHoHoHooHoHoq HqHqqHqHqHqqHqHqH " + "HoHoHooHoHoHoHoHoo HHHHHHHH",
    "uni2": "pat:HHqHqHqHqHqHHqq HqHqHqHqHqHqHqH " + KPH + "HqHqHqHqHqHqHqHq " + "HHoHooHoHoHooHoHoo " + "HqHqHqHqHqHqqHqH " + KPH + "HHHHHHHH",
}


TAIL3 = KPH + "HqHqHqHqqHqHqHqHq " + "HHoHooHoHoHooHoHoo " + "HqHqqHqHqHqHqqHqH " + KPH + "HHHHHHHH"
PATS["st6"] = "pat:SpSppSppSppSpSppN CHCCHCqCCqq HqHqqHqHqqHqHqHqH " + TAIL3
PATS["st6b"] = "pat:pSpSpSpSpSpSppppN CHCCHCqCCqq HqHqqHqHqqHqHqHqH " + TAIL3
VQ10 = "HqHqqHqHqHqqHqHqqH "
TAIL4 = KPH + VQ10 + KPH + VQ10 + KPH + "HHHHHHHH"
PATS["sv6"] = "pat:SpSppSppSppSpSppN CHCHCCCCNN HqHqqHqHqHqqHqHqqH " + TAIL4
PATS["sv6b"] = "pat:SpSpSpSpSpSpppppN CHCHCCCCNN HqHqqHqHqHqqHqHqqH " + TAIL4
PATS["sv6c"] = "pat:ppSpSpSpSppSpSppN CHCHCCCCNN HqHqqHqHqHqqHqHqqH " + TAIL4
PATS["st4"] = "pat:SppSpppSppSpppN CHCHCHqCHqqq HqHqHqHqqHqHqHqH " + TAIL3


def default_seq(order):
    order = PATS.get(order, order)
    Q = lambda u, j: ("Q", u, j)
    K = lambda u, j: ("K", u, j)
    V = lambda u, j: ("V", u, j)
    O = lambda u, j: ("O", u, j)
    N = ("N", 0, 0)
    own_head = "p" in order[4:] and order.startswith("pat:")
    s = [] if own_head else [Q(0, j) for j in range(10)] + [N]
    if order == "alt":
        s += [K(0, j) for j in range(8)] + [Q(1, 0), Q(1, 1)]
        for j in range(6):
            s += [V(0, j), Q(1, j + 2)]
        s += [V(0, 6), V(0, 7), Q(1, 8), Q(1, 9)]
        for u in (1, 2):
            s += [O(u - 1, 0), O(u - 1, 1)]
            for j in range(8):
                s += [K(u, j), O(u - 1, j + 2)]
            for j in range(8):
                s += [Q(u + 1, j), V(u, j)]
            s += [Q(u + 1, 8), Q(u + 1, 9)]
        s += [O(2, 0), O(2, 1)]
        for j in range(6):
            s += [K(3, j), O(2, j + 2)]
        s += [K(3, 6), K(3, 7), O(2, 8), O(2, 9)]
        s += [V(3, j) for j in range(8)]
    elif order.startswith("pat:"):
        qs = [Q(u, j) for u in (1, 2, 3) for j in range(10)]
        os_ = [O(u, j) for u in (0, 1, 2) for j in range(10)]
        hs = [f(u, j) for u in range(4) for f in (K, V) for j in range(8)]
        ps = [Q(0, j) for j in range(10)]
        st = []
        for ch in order[4:]:
            if ch == "p":
                s.append(ps.pop(0))
            elif ch == "N":
                s.append(N)
            elif ch == "S":
                e = hs.pop(0)
                st.append(e)
                s.append(("S",) + e[1:])
            elif ch == "C":
                s.append(("C",) + st.pop(0)[1:])
            elif ch == "H":
                s.append(hs.pop(0))
            elif ch == "q":
                s.append(qs.pop(0))
            elif ch == "o":
                s.append(os_.pop(0))
        assert not qs and not os_ and not hs, (len(qs), len(os_), len(hs))
    elif order == "coarse":
        s += [K(0, j) for j in range(8)] + [Q(1, 0), Q(1, 1)] + [V(0, j) for j in range(8)] + [Q(1, j) for j in range(2, 10)]
        for u in (1, 2):
            s += [O(u - 1, 0), O(u - 1, 1)] + [K(u, j) for j in range(8)] + [O(u - 1, j) for j in range(2, 10)]
            s += [V(u, j) for j in range(8)] + [Q(u + 1, j) for j in range(10)]
        s += [O(2, 0), O(2, 1)] + [K(3, j) for j in range(8)] + [O(2, j) for j in range(2, 10)]
        s += [V(3, j) for j in range(8)]
    elif order == "pair":
        s += [K(0, j) for j in range(8)] + [Q(1, 0), Q(1, 1)]
        for p in range(3):
            s += [V(0, 2 * p), V(0, 2 * p + 1), Q(1, 2 * p + 2), Q(1, 2 * p + 3)]
        s += [V(0, 6), V(0, 7), Q(1, 8), Q(1, 9)]
        for u in (1, 2, 3):
            s += [O(u - 1, 0), O(u - 1, 1)]
            for p in range(4):
                s += [K(u, 2 * p), K(u, 2 * p + 1), O(u - 1, 2 * p + 2), O(u - 1, 2 * p + 3)]
            if u < 3:
                for p in range(4):
                    s += [V(u, 2 * p), V(u, 2 * p + 1), Q(u + 1, 2 * p), Q(u + 1, 2 * p + 1)]
                s += [Q(u + 1, 8), Q(u + 1, 9)]
            else:
                s += [V(3, j) for j in range(8)]
    s += [N] + [O(3, j) for j in range(10)] + [N]
    return s


STASH = [("v", S0 + 80), ("v", S0 + 32), ("a", 0), ("a", 48), ("a", 96), ("a", 144)]


def dma_tile(cfg, ent, k):
    ty, u, j = ent
    if ty == "S":
        ty = "K"
    u *= cfg["hstr"]
    if cfg["dbg"] and "wsame" in cfg["dbg"] and ty in "QO":
        u = 0
    if cfg["dbg"] and "hsame" in cfg["dbg"] and ty in "KV":
        u, j = 0, 0
    slot = SLOT0 + (k % 4) * SLOTSZ
    g = []
    ntw = cfg["nt_w"] if j >= cfg["ntfirst"] else "nt"

    def ld(vo, srd, so, m0c, imm, fl):
        off = f" offset:{imm}" if imm else ""
        fl = f" {fl}" if fl else ""
        return [salu(f"s_add_u32 m0, s{S_W2K}, {m0c}", ["m0"], [f"s{S_W2K}"]),
                I(f"buffer_load_dwordx4 v{vo}, s[{srd}:{srd + 3}], s{so} offen{off}{fl} lds", "dma",
                  [f"v{vo}", f"s{so}", "m0"], [], 12, tag=k)]

    if ty in "KV" and cfg["lin"]:
        srd = SK if ty == "K" else SV
        fl = f" {cfg['nt_kv']}" if cfg["nt_kv"] else ""
        for jj in range(6):
            x = []
            vo = (VKV, VKV + 1, VKV3)[jj % 3]
            if jj % 3 == 0:
                x.append(salu(f"s_mov_b32 s{ST}, {u * 196608 + j * 24576 + 1024 * jj}", [f"s{ST}"]))
                x.append(salu(f"s_add_u32 m0, s{S_W6K}, {slot + 1024 * jj}", ["m0"], [f"s{S_W6K}"]))
            if jj >= 3:
                x.append(valu(f"v_xor_b32 v{TKV}, 32, v{vo}", [f"v{TKV}"], [f"v{vo}"]))
                vo = TKV
            off = f" offset:{1024 * (jj % 3)}" if jj % 3 else ""
            x.append(I(f"buffer_load_dwordx4 v{vo}, s[{srd}:{srd + 3}], s{ST} offen{off}{fl} lds", "dma",
                       [f"v{vo}", f"s{ST}", "m0"], [], 12, tag=k))
            g.append(x)
    elif ty in "KVQ":
        if ty == "Q":
            pre = salu(f"s_add_u32 s{ST}, s{TB1 + j}, {u * 384}", [f"s{ST}"])
            vo, srd, fl = VWQ, SWQ, ntw
        else:
            pre = salu(f"s_mov_b32 s{ST}, {u * 196608 + j * 24576}", [f"s{ST}"])
            vo, srd, fl = VKV, (SK if ty == "K" else SV), cfg["nt_kv"]
        if ty == "Q":
            for par in range(2):
                g.append(ld(VXO + par, SX, TB2 + j, XP0 + (k % 4) * XPSZ + par * 1024, 0, cfg["nt_x"]))
        first = True
        for par in range(2):
            for cb in range(3):
                x = ld(vo + par, srd, ST, slot + (8 * cb + par) * 1024 - 128 * cb, 128 * cb, fl)
                if first:
                    x = [pre] + x
                    first = False
                g.append(x)
    else:
        for i in range(3):
            pre = salu(f"s_add_u32 s{ST}, s{TB2 + j}, {u * 245760 + 81920 * i}", [f"s{ST}"])
            for par in range(2):
                x = ld(VXO + par, SWO, ST, slot + (8 * i + par) * 1024, 0, ntw)
                g.append(([pre] if par == 0 else []) + x)
    return g


def addr_setup(cfg, ent, k):
    ty = "K" if ent[0] == "S" else ent[0]
    slot = SLOT0 + (k % 4) * SLOTSZ
    r = []
    if ty in "KQ":
        sreg, base = (S_KH, slot) if ty == "K" else (S_QH, XP0 + (k % 4) * XPSZ)
        r.append(salu(f"s_add_u32 s{ST + 1}, s{sreg}, {base}", [f"s{ST + 1}"]))
        rb = RBK if ty == "K" and cfg["lin"] else RB
        r.append(valu(f"v_add_u32 v{AB}, s{ST + 1}, v{rb}", [f"v{AB}"], [f"v{rb}"]))
        r.append(valu(f"v_xor_b32 v{AB + 1}, 32, v{AB}", [f"v{AB + 1}"], [f"v{AB}"]))
        r.append(valu(f"v_xor_b32 v{AB + 2}, 64, v{AB}", [f"v{AB + 2}"], [f"v{AB}"]))
        r.append(valu(f"v_xor_b32 v{AB + 3}, 64, v{AB + 1}", [f"v{AB + 3}"], [f"v{AB + 1}"]))
    if ty in "VQO":
        tb = TRV if ty == "V" and cfg["lin"] else TRB
        r.append(valu(f"v_add_u32 v{AT}, {slot}, v{tb}", [f"v{AT}"], [f"v{tb}"]))
        r.append(valu(f"v_xor_b32 v{AT + 1}, 16, v{AT}", [f"v{AT + 1}"], [f"v{AT}"]))
    return r


def tile_ops(cfg, ent, k, oreg, m0idx, firstk, nx):
    ty, u, j = ent
    mf, rg = [], []
    kcb = 128 if cfg["lin"] else 8192
    for m in range(12):
        p = POOL + 4 * ((m0idx + m) % 8)
        rd = []
        if ty in "KC":
            if firstk:
                rd.append(ds_rd("ds_read_b128", "a", QF + 4 * m, 4, XR, QX0 + 8192 * (m >> 2) + 1024 * (m & 3)))
            if ty == "K":
                rd.append(ds_rd("ds_read_b128", "v", p, 4, AB + (m & 3), kcb * (m >> 2)))
                mf.append(mfma("v", S0 + 16 * j, "v", p, "a", QF + 4 * m, m == 0))
            else:
                mf.append(mfma("v", S0 + 16 * j, STASH[j][0], STASH[j][1] + 4 * m, "a", QF + 4 * m, m == 0))
        elif ty == "S":
            rd.append(ds_rd("ds_read_b128", STASH[j][0], STASH[j][1] + 4 * m, 4, AB + (m & 3), kcb * (m >> 2)))
        elif ty == "O":
            if j == 0:
                rd.append(ds_rd("ds_read_b128", "a", OA + 4 * m, 4, XR, oreg[u][m >> 2] + 1024 * (m & 3)))
            for e in range(2):
                rd.append(ds_rd("ds_read_b64_tr_b16", "v", p + 2 * e, 2, AT + e, 2048 * m + 512 * e))
            mf.append(mfma("a", OUT + 16 * j, "v", p, "a", OA + 4 * m, u == 0 and m == 0))
        else:
            t4, dt = divmod(m, 3)
            if dt == 0:
                if ty == "V":
                    rd.append(ds_rd("ds_read_b128", "v", S0 + 16 * j + 4 * t4, 4, XR, XP0 + (k % 4) * XPSZ + 1024 * t4))
                else:
                    rd.append(ds_rd("ds_read_b128", "v", XF + 4 * ((nx + t4) % 3), 4, AB + t4, 0))
            for e in range(2):
                off = (8 * dt + 2 * t4) * 1024 + 512 * e
                if ty == "V" and cfg["lin"]:
                    off = 6144 * t4 + 1536 * e + 128 * dt
                rd.append(ds_rd("ds_read_b64_tr_b16", "v", p + 2 * e, 2, AT + e, off))
            if ty == "V":
                mf.append(mfma("a", OA + 16 * dt, "v", p, "v", S0 + 16 * j + 4 * t4, j == 0 and t4 == 0))
            else:
                mf.append(mfma("v", QA + 16 * dt, "v", p, "v", XF + 4 * ((nx + t4) % 3), j == 0 and t4 == 0))
        rg.append(rd)
    return mf, rg


def v(n):
    return f"v{n}"


def task_max(j, first):
    s = S0 + 16 * j
    r = []
    if first:
        r.append(valu(f"v_max3_f32 v{VM}, v{s}, v{s + 1}, v{s + 2}", [v(VM)], rr("v", s, 3)))
        for i in range(3, 15, 2):
            r.append(valu(f"v_max3_f32 v{VM}, v{VM}, v{s + i}, v{s + i + 1}", [v(VM)], [v(VM)] + rr("v", s + i, 2)))
        r.append(valu(f"v_max_f32 v{VM}, v{VM}, v{s + 15}", [v(VM)], [v(VM), v(s + 15)]))
    else:
        for i in range(0, 16, 2):
            r.append(valu(f"v_max3_f32 v{VM}, v{VM}, v{s + i}, v{s + i + 1}", [v(VM)], [v(VM)] + rr("v", s + i, 2)))
    return r


def cross_half(reg, op, off):
    return [valu(f"v_mov_b32 v{T0}, v{reg}", [v(T0)], [v(reg)]),
            I(f"v_permlane32_swap_b32 v{T0}, v{reg}", "perm", [v(T0), v(reg)], [v(T0), v(reg)]),
            valu(f"{op} v{reg}, v{reg}, v{T0}", [v(reg)], [v(reg), v(T0)]),
            ds_wr("ds_write_b32", XW, "v", reg, 1, off)]


def task_maxr():
    return [ds_rd("ds_read_b32", "v", T1, 1, XR, MXO), ds_rd("ds_read_b32", "v", T2, 1, XR, MXO + 2048),
            valu(f"v_max_f32 v{T1}, v{T1}, v{T2}", [v(T1)], [v(T1), v(T2)]),
            valu(f"v_mul_f32 v{VMC}, s{S_C}, v{T1}", [v(VMC)], [v(T1)])]


def task_p(j, pbase):
    s = S0 + 16 * j
    r = []
    fma = lambda i: valu(f"v_fma_f32 v{s + i}, v{s + i}, s{S_C}, -v{VMC}", [v(s + i)], [v(s + i), v(VMC)])
    ex = lambda i: trans(f"v_exp_f32 v{s + i}, v{s + i}", [v(s + i)], [v(s + i)])

    def add(i):
        l = VL0 + (i & 1)
        if j == 0 and i < 2:
            return valu(f"v_mov_b32 v{l}, v{s + i}", [v(l)], [v(s + i)])
        return valu(f"v_add_f32 v{l}, v{l}, v{s + i}", [v(l)], [v(l), v(s + i)])

    cvt = lambda kk: valu(f"v_cvt_pk_bf16_f32 v{s + kk}, v{s + 2 * kk}, v{s + 2 * kk + 1}", [v(s + kk)], rr("v", s + 2 * kk, 2))
    r += [fma(0), fma(1)]
    for kk in range(8):
        r += [ex(2 * kk), ex(2 * kk + 1)]
        if kk < 7:
            r += [fma(2 * kk + 2), fma(2 * kk + 3)]
        r += [add(2 * kk), add(2 * kk + 1), cvt(kk)]
        if kk in (3, 7):
            a = kk >> 2
            r.append(ds_wr("ds_write_b128", XW, "v", s + 4 * a, 4, pbase + 1024 * a))
    return r


def task_lx():
    return [valu(f"v_add_f32 v{VL0}, v{VL0}, v{VL1}", [v(VL0)], [v(VL0), v(VL1)])] + cross_half(VL0, "v_add_f32", LXO)


def task_onorm(oreg):
    pre = [ds_rd("ds_read_b32", "v", T1, 1, XR, LXO), ds_rd("ds_read_b32", "v", T2, 1, XR, LXO + 2048),
           valu(f"v_add_f32 v{T1}, v{T1}, v{T2}", [v(T1)], [v(T1), v(T2)]),
           trans(f"v_rcp_f32 v{T3}, v{T1}", [v(T3)], [v(T1)])]
    r = []
    for dt in range(3):
        s = S0 + 16 * (4 + dt)
        for a in range(2):
            for i in range(8 * a, 8 * a + 8):
                r.append(valu(f"v_accvgpr_read_b32 v{s + i}, a{OA + 16 * dt + i}", [v(s + i)], [f"a{OA + 16 * dt + i}"]))
            for i in range(8 * a, 8 * a + 8):
                r.append(valu(f"v_mul_f32 v{s + i}, v{s + i}, v{T3}", [v(s + i)], [v(s + i), v(T3)]))
            for kk in range(4):
                d = s + 8 * a + kk
                r.append(valu(f"v_cvt_pk_bf16_f32 v{d}, v{s + 8 * a + 2 * kk}, v{s + 8 * a + 2 * kk + 1}", [v(d)], rr("v", s + 8 * a + 2 * kk, 2)))
            r.append(ds_wr("ds_write_b128", XW, "v", s + 8 * a, 4, oreg[dt] + 1024 * a))
    return pre, r


def task_qcvt():
    c, w = [], []
    for dt in range(3):
        s = QA + 16 * dt
        for a in range(2):
            for kk in range(4):
                d = s + 8 * a + kk
                c.append(valu(f"v_cvt_pk_bf16_f32 v{d}, v{s + 8 * a + 2 * kk}, v{s + 8 * a + 2 * kk + 1}", [v(d)], rr("v", s + 8 * a + 2 * kk, 2)))
            w.append(ds_wr("ds_write_b128", XW, "v", s + 8 * a, 4, QX0 + 8192 * dt + 1024 * a))
    return c, w


def task_out(cfg, j):
    s = QA + 16 * (j % 3)
    r = [salu(f"s_lshl_b32 s{ST + 2}, s{TB2 + j}, 6", [f"s{ST + 2}"])]
    fl = f" {cfg['st_flags']}" if cfg["st_flags"] else ""
    for a in range(2):
        for i in range(8 * a, 8 * a + 8):
            r.append(valu(f"v_accvgpr_read_b32 v{s + i}, a{OUT + 16 * j + i}", [v(s + i)], [f"a{OUT + 16 * j + i}"]))
        for kk in range(4):
            d = s + 8 * a + kk
            r.append(valu(f"v_cvt_pk_bf16_f32 v{d}, v{s + 8 * a + 2 * kk}, v{s + 8 * a + 2 * kk + 1}", [v(d)], rr("v", s + 8 * a + 2 * kk, 2)))
        off = f" offset:{1024 * a}" if a else ""
        r.append(I(f"buffer_store_dwordx4 v[{s + 8 * a}:{s + 8 * a + 3}], v{VST}, s[{SWS}:{SWS + 3}], s{ST + 2} offen{off}{fl}", "vst",
                   rr("v", s + 8 * a, 4) + [v(VST), f"s{ST + 2}"], [], 12, data=rr("v", s + 8 * a, 4)))
    return r


def setmin(lst, pos):
    for i in lst:
        i.minpos = pos
    return lst


def split(lst, n):
    tot = sum(i.cost for i in lst)
    parts, cur, acc = [], [], 0
    for i in lst:
        if acc + i.cost / 2 > tot * (len(parts) + 1) / n and len(parts) < n - 1:
            parts.append(cur)
            cur = []
        cur.append(i)
        acc += i.cost
    parts.append(cur)
    while len(parts) < n:
        parts.append([])
    return parts


def build_main(cfg):
    seq = cfg.get("seq") or default_seq(cfg["order"])
    n = len(seq)
    idx = {e: i for i, e in enumerate(seq) if e[0] != "N"}
    real = [i for i, e in enumerate(seq) if e[0] not in "NC"]
    kc = {u: [i for i, e in enumerate(seq) if e[0] in "KC" and e[1] == u] for u in range(4)}
    for j, (pf, base) in enumerate(STASH):
        if ("S", 0, j) in idx and pf == "v":
            for i in kc[0]:
                jj = seq[i][2]
                if base <= S0 + 16 * jj < base + 48:
                    assert i > idx[("C", 0, j)], (j, jj)
    kof = {i: k for k, i in enumerate(real)}
    tasks = [[] for _ in range(n)]
    LATE = 5
    dma_iv = {k: (0 if k < 4 else real[k - 4] + 1) for k in range(len(real))}
    win = [[] for _ in range(4)]
    for k, i in enumerate(real):
        if seq[i][0] == "Q":
            win[k % 4].append((dma_iv[k], i))
    oreg = {}
    owin = {}
    for u in range(4):
        for i in kc[u]:
            tasks[i + 1] += setmin(task_max(seq[i][2], i == kc[u][0]), LATE)
        i7 = kc[u][-1]
        tasks[i7 + 1] += setmin(cross_half(VM, "v_max_f32", MXO), LATE)
        iv = [idx[("V", u, j)] for j in range(8)]
        assert iv[0] >= i7 + 3
        tasks[i7 + 2] += task_maxr()
        lo = i7 + 2
        for j in range(8):
            kv = kof[iv[j]]
            lo = max(lo, real[kv - 4] + 1)
            t = task_p(j, XP0 + (kv % 4) * XPSZ) + (task_lx() if j == 7 else [])
            dbg = cfg["dbg"] or ""
            if "noexp" in dbg:
                t = [x for x in t if x.k != "trans"]
            if "nopw" in dbg:
                t = [x for x in t if x.k != "ds_wr"]
            if "nopv" in dbg:
                t = [x for x in t if x.k == "ds_wr"]
            if "nofma" in dbg:
                t = [x for x in t if not x.t.startswith("v_fma")]
            if "nocvt" in dbg:
                t = [x for x in t if not x.t.startswith("v_cvt")]
            parts = split(t, iv[j] - lo)
            for d, p in enumerate(parts):
                tasks[lo + d] += p
            win[kv % 4].append((lo, iv[j]))
            lo = iv[j]
        io0 = idx[("O", u, 0)]
        assert io0 >= iv[7] + 2
        owin[u] = (iv[7] + 1, io0)
        iq9 = idx[("Q", u, 9)]
        ik0 = kc[u][0]
        assert ik0 >= iq9 + 2
        c, w = task_qcvt()
        tasks[iq9 + 1] += setmin(c + w, LATE)
        if u > 0:
            assert iq9 + 1 > kc[u - 1][0]
            assert idx[("O", u - 1, 9)] < iv[0]
            assert ik0 > idx[("V", u - 1, 7)]
        if u < 3:
            assert idx[("Q", u + 1, 0)] >= iq9 + 2
            assert io0 <= idx[("K", u + 1, 4)]
    for u in range(4):
        a, b = owin[u]
        free = [p for p in range(4) if all(b < c or d < a for c, d in win[p])]
        assert len(free) >= 3, (u, free)
        oreg[u] = [XP0 + p * XPSZ for p in free[:3]]
        for p in free[:3]:
            win[p].append((a, b))
        pre, body = task_onorm(oreg[u])
        parts = split(body, b - a)
        tasks[a] += pre + setmin(parts[0], LATE)
        for d, p in enumerate(parts[1:]):
            tasks[a + 1 + d] += p
    for p in range(4):
        w = sorted(win[p])
        assert all(w[i][1] < w[i + 1][0] for i in range(len(w) - 1)), (p, w)
    for j in range(10):
        tasks[idx[("O", 3, j)] + 1] += setmin(task_out(cfg, j), LATE)

    prog = []
    for k in range(3):
        for g in dma_tile(cfg, seq[real[k]], k):
            prog += g
    prog += addr_setup(cfg, seq[0], 0)
    left = []
    npool = 0
    nx = 0
    for i, ent in enumerate(seq):
        isreal = ent[0] not in "NC"
        k = kof.get(i)
        if cfg["stamps"]:
            prog += stamp(i)
        early = cfg["fuse"] and cfg["early"]
        e0 = cfg["early"]
        if early and ent == ("O", 3, e0):
            prog.append(waitbar(len(real) - 1))
            prog += raw([f"v_readfirstlane_b32 s3, v{PFD}", "s_nop 3"])
        else:
            prog.append(waitbar(k if isreal else None))
        if early and ent == ("O", 3, e0 - 2):
            prog += raw(red_setup() + ["s_lshl_b32 s59, s90, 7", f"v_mov_b32 v{T0}, 0"])
            prog.append(I(f"buffer_load_dword v{PFD}, v{T0}, s[{SRD_F}:{SRD_F + 3}], s59 offen sc1", "dma", tag=len(real) - 1))
        if cfg["fuse"] and i == cfg["iv_ready"]:
            prog += ready_add()
        if cfg["fuse"] and i == cfg["iv_chk"]:
            prog += ready_load()
        if ent[0] != "N":
            mf, rg = tile_ops(cfg, ent, k, oreg, npool, ent[0] in "KC" and i == kc[ent[1]][0], nx)
            if ent[0] in "QKVO":
                npool += 12
            if ent[0] == "Q":
                nx += 4
        else:
            mf, rg = [], []
        mlist = left + mf[:9]
        npos = len(mlist) + 1
        fixed = [[] for _ in range(npos)]
        if ent[0] == "S":
            for g in range(12):
                fixed[min(g // 6, npos - 1)] += rg[g]
        elif ent[0] != "N":
            if left:
                fixed[0] += rg[0] + rg[1]
                for g in range(2, 12):
                    fixed[g - 1] += rg[g]
            else:
                for g in range(5):
                    fixed[0] += rg[g]
                for g in range(5, 12):
                    fixed[g - 4] += rg[g]
        prev_real = i == 0 or seq[i - 1][0] not in "NC"
        knext = None
        if prev_real:
            kk = (kof[i - 1] + 4) if i > 0 else 3
            if kk < len(real):
                knext = kk
        if knext is not None:
            groups = dma_tile(cfg, seq[real[knext]], knext)
            if cfg["pfw"]:
                kp = knext + cfg["pfw"]
                if kp < len(real) and seq[real[kp]][0] in "QO" and seq[real[kp]][2] == 0 and seq[real[kp]][:2] != ("Q", 0):
                    ty, u = seq[real[kp]][:2]
                    u *= cfg["hstr"]
                    vo, srd, so = (PFQ, SWQ, u * 384) if ty == "Q" else (PFO, SWO, u * 245760)
                    groups.append([salu(f"s_mov_b32 s{ST + 3}, {so}", [f"s{ST + 3}"]),
                                   I(f"buffer_load_dword v{PFD}, v{vo}, s[{srd}:{srd + 3}], s{ST + 3} offen", "dma",
                                     [f"v{vo}", f"s{ST + 3}"], [], 12, tag=knext)])
            span = max(min(npos - 2, cfg["dspan"]), 1)
            for gi, g in enumerate(groups):
                pos = min(cfg["dstart"] + gi * span // len(groups), npos - 1)
                if any(x.k == "dma" for x in fixed[pos]):
                    fixed[pos] += g
                else:
                    fixed[pos] = g[:-1] + fixed[pos] + g[-1:]
        if early and ent[:2] == ("O", 3) and ent[2] >= e0:
            nint = 10 - e0
            mine = [p for p in range(8) if p * nint // 8 == ent[2] - e0]
            for gi, p in enumerate(mine):
                fixed[1 + gi * (npos - 2) // len(mine)] += raw(fetch_block(p, 3, "L_early"))
        if i + 1 < n and seq[i + 1][0] not in "NC":
            fixed[npos - 1] += addr_setup(cfg, seq[i + 1], kof[i + 1])
        q = list(tasks[i])
        if cfg["dbg"] and "noallw" in cfg["dbg"]:
            q = [t for t in q if t.k != "ds_wr"]
        if cfg["dbg"] and "noacc" in cfg["dbg"]:
            q = [t for t in q if not (t.t.startswith("v_accvgpr") or t.t.startswith("v_mul_f32"))]
        if cfg["dbg"] and "nomax" in cfg["dbg"]:
            q = [t for t in q if not t.t.startswith("v_max3")]
        if cfg["dbg"] and "notask" in cfg["dbg"]:
            q = [t for t in q if t.k == "vst"]
        wr = []
        if cfg["wlast"]:
            wr = [t for t in q if t.k == "ds_wr"]
            q = [t for t in q if t.k != "ds_wr"]
        if not left:
            for t in q:
                t.minpos = 0
        for t in q:
            t.minpos = min(t.minpos, npos - 1)
        tot = sum(x.cost for f in fixed for x in f) + sum(x.cost for x in q)
        budget = max(24.0, tot / max(npos - (cfg["wlast"] if wr else 0), 1))
        for pos in range(npos):
            used = sum(x.cost for x in fixed[pos])
            extra = []
            wpos = max(npos - 1 - cfg["wlast"], 0)
            while q and q[0].minpos <= pos and (used < budget or pos == npos - 1 or (wr and pos >= wpos)):
                x = q.pop(0)
                extra.append(x)
                used += x.cost
            if wr and not q and pos >= wpos:
                extra += wr
                wr = []
            if cfg.get("fine") == i:
                sp = (list(range(4, 24, 2)) + [96, 98, 100])[pos]
                prog.append(I(f"s_memtime s[{sp}:{sp + 1}]", "other"))
            prog += fixed[pos] + extra
            if pos < len(mlist):
                prog.append(mlist[pos])
        assert not q and not wr
        if cfg.get("fine") == i:
            prog.append(I("s_waitcnt lgkmcnt(0)", "other"))
            for pos in range(npos):
                sp = (list(range(4, 24, 2)) + [96, 98, 100])[pos]
                prog.append(I(f"s_sub_u32 s{sp}, s{sp}, s84", "other"))
                prog.append(I(f"v_writelane_b32 v251, s{sp}, {32 + pos}", "other"))
        left = mf[9:]
    assert not left
    return prog, seq


def raw(lines):
    return [I(t, "other") for t in lines]


def wave0(label, lines):
    return raw([f"s_cmp_eq_u32 s{S_WAVE}, 0", f"s_cbranch_scc0 {label}"] + lines + [f"{label}:"])


def ready_add():
    return wave0("L_rdy_skip", ["s_mov_b64 exec, 1", f"v_mov_b32 v{T0}, 1", f"v_mov_b32 v{VRDY}, 0",
                                f"buffer_atomic_add v{T0}, v{VRDY}, s[{SRD_D}:{SRD_D + 3}], 0 offen sc1",
                                "s_mov_b64 exec, -1"])


def ready_load():
    return wave0("L_chk_skip", [f"v_mov_b32 v{T0}, 0",
                                f"buffer_load_dword v{VRDY}, v{T0}, s[{SRD_D}:{SRD_D + 3}], 0 offen sc1"])


def red_setup():
    o = []
    a = o.append
    a(f"v_lshrrev_b32 v100, 4, v{XR}")
    a("v_and_b32 v100, 63, v100")
    a("v_lshrrev_b32 v101, 3, v100")
    a("s_and_b32 s20, s90, 3")
    a("s_lshl_b32 s20, s20, 3")
    a("v_add_u32 v101, s20, v101")
    a("v_bfe_u32 v102, v100, 2, 1")
    a("v_lshlrev_b32 v102, 12, v102")
    a("v_bfe_u32 v103, v100, 1, 1")
    a("v_lshl_or_b32 v102, v103, 10, v102")
    a("v_and_b32 v103, 1, v100")
    a("v_lshl_or_b32 v102, v103, 9, v102")
    a("v_lshl_or_b32 v102, v101, 4, v102")
    a("v_and_b32 v103, 19, v101")
    a("v_bfe_u32 v104, v101, 2, 1")
    a("v_lshl_or_b32 v103, v104, 3, v103")
    a("v_bfe_u32 v104, v101, 3, 1")
    a("v_lshl_or_b32 v103, v104, 2, v103")
    a("s_movk_i32 s20, 2560")
    a("v_and_b32 v104, 7, v100")
    a("v_lshlrev_b32 v104, 4, v104")
    a("v_mad_u32_u24 v103, v103, s20, v104")
    a("s_lshr_b32 s22, s90, 2")
    a("s_lshl_b32 s23, s22, 11")
    a(f"s_lshl_b32 s20, s{S_WAVE}, 13")
    a("s_add_u32 s23, s23, s20")
    a("s_lshl_b32 s20, s92, 1")
    a("s_add_u32 s22, s22, s20")
    a("s_mul_i32 s22, s22, 81920")
    a("s_mul_i32 s20, s93, 1280")
    a("s_add_u32 s22, s22, s20")
    a(f"s_lshl_b32 s20, s{S_WAVE}, 7")
    a("s_add_u32 s22, s22, s20")
    return o


def fetch_block(p, sreg, label):
    o = [f"s_bitcmp1_b32 s{sreg}, {p}", f"s_cbranch_scc0 {label}{p}"]
    for ci in range(3):
        r = 32 * ci + 4 * p
        if ci == 2:
            o += [f"s_cmp_lt_u32 s{S_WAVE}, 2", f"s_cbranch_scc0 {label}{p}"]
        o += [f"s_add_u32 s20, s23, {ci * 32768 + p * 81920}",
              f"buffer_load_dwordx4 v[{r}:{r + 3}], v102, s[{SRD_P}:{SRD_P + 3}], s20 offen sc1"]
    return o + [f"{label}{p}:"]


def final_reduce(cfg):
    o = []
    a = o.append

    def rt(n):
        if cfg["stamps"]:
            a("s_memrealtime s[86:87]")
            a("s_waitcnt lgkmcnt(0)")
            a(f"v_writelane_b32 v251, s86, {n}")

    rt(50)
    a("s_waitcnt vmcnt(0)")
    rt(51)
    a("s_barrier")
    a(f"s_cmp_eq_u32 s{S_WAVE}, 0")
    a("s_cbranch_scc0 L_sig_skip")
    a("s_mov_b32 s21, 0")
    a("L_rdy_loop:")
    a(f"v_readfirstlane_b32 s20, v{VRDY}")
    a("s_add_u32 s21, s21, 1")
    a("s_cmp_ge_u32 s21, 0x40000")
    a("s_cbranch_scc1 L_rdy_ok")
    a("s_cmp_ge_u32 s20, 8")
    a("s_cbranch_scc1 L_rdy_ok")
    a(f"v_mov_b32 v{T0}, 0")
    a(f"buffer_load_dword v{VRDY}, v{T0}, s[{SRD_D}:{SRD_D + 3}], 0 offen sc1")
    a("s_waitcnt vmcnt(0)")
    a("s_branch L_rdy_loop")
    a("L_rdy_ok:")
    a("s_lshl_b32 s20, 1, s90")
    a(f"v_lshrrev_b32 v{T1}, 4, v{VST}")
    a(f"v_lshlrev_b32 v{T1}, 7, v{T1}")
    a(f"v_mov_b32 v{T0}, s20")
    a("s_mov_b64 exec, 0xff")
    a(f"buffer_atomic_add v{T0}, v{T1}, s[{SRD_F}:{SRD_F + 3}], 0 offen sc1")
    a("s_mov_b64 exec, -1")
    a("L_sig_skip:")
    if not cfg["early"]:
        o += red_setup()
        a("s_mov_b32 s3, 0")
    poll = f"buffer_load_dword v{T1}, v{T0}, s[{SRD_F}:{SRD_F + 3}], s59 offen sc1"
    NEW, PEND, ACC = ST + 4, ST + 3, 128
    a("s_lshl_b32 s59, s90, 7")
    a(f"v_mov_b32 v{T0}, 0")
    a(poll)
    a("s_mov_b32 s21, 0")
    a(f"s_mov_b32 s{PEND}, s3")
    a(f"s_mov_b32 s{ST}, 0xffff0000")
    for r in range(24):
        a(f"v_mov_b32 v{ACC + r}, 0")
    a("L_poll:")
    a("s_add_u32 s21, s21, 1")
    a("s_waitcnt vmcnt(0)")
    a(f"v_readfirstlane_b32 s20, v{T1}")
    a("s_nop 2")
    a("s_cmp_ge_u32 s21, 0x40000")
    a("s_cselect_b32 s20, 0xff, s20")
    a(f"s_andn2_b32 s{NEW}, s20, s3")
    a("s_or_b32 s3, s3, s20")
    for p in range(8):
        o += fetch_block(p, NEW, "L_nop")
    a("s_cmp_eq_u32 s3, 0xff")
    a("s_cbranch_scc1 L_nopoll")
    a(poll)
    a("L_nopoll:")
    for p in range(8):
        a(f"s_bitcmp1_b32 s{PEND}, {p}")
        a(f"s_cbranch_scc0 L_acc{p}")
        for ci in range(3):
            if ci == 2:
                a(f"s_cmp_lt_u32 s{S_WAVE}, 2")
                a(f"s_cbranch_scc0 L_acc{p}")
            for d in range(4):
                src = 32 * ci + 4 * p + d
                a(f"v_lshlrev_b32 v{108 + 2 * d}, 16, v{src}")
                a(f"v_and_b32 v{109 + 2 * d}, s{ST}, v{src}")
            for d in range(8):
                a(f"v_add_f32 v{ACC + 8 * ci + d}, v{ACC + 8 * ci + d}, v{108 + d}")
        a(f"L_acc{p}:")
    a(f"s_mov_b32 s{PEND}, s{NEW}")
    a(f"s_cmp_lg_u32 s{PEND}, 0")
    a("s_cbranch_scc1 L_poll")
    a("s_cmp_eq_u32 s3, 0xff")
    a("s_cbranch_scc0 L_poll")
    rt(52)
    if cfg["stamps"]:
        a("v_writelane_b32 v251, s21, 55")
    for ci in range(3):
        if ci == 2:
            a(f"s_cmp_lt_u32 s{S_WAVE}, 2")
            a("s_cbranch_scc0 L_fin")
        for d in range(4):
            a(f"v_cvt_pk_bf16_f32 v{116 + 4 * ci + d}, v{ACC + 8 * ci + 2 * d}, v{ACC + 8 * ci + 2 * d + 1}")
        off = f" offset:{512 * ci}" if ci else ""
        a(f"buffer_store_dwordx4 v[{116 + 4 * ci}:{119 + 4 * ci}], v103, s[{SRD_O}:{SRD_O + 3}], s22 offen{off}")
    a("L_fin:")
    rt(53)
    return o


def stamp(i):
    return [I(f"s_memtime s[86:87]", "other"), I("s_waitcnt lgkmcnt(0)", "other"),
            I(f"s_sub_u32 s86, s86, s84", "other"),
            I(f"v_writelane_b32 v{249 + (i >> 6)}, s86, {i & 63}", "other")]


def prologue(cfg, codebytes):
    o = []
    a = o.append
    a("s_cmp_ge_u32 s2, 256")
    a("s_cbranch_scc0 L_main_go")
    a("s_endpgm")
    a("L_main_go:")
    a("s_load_dwordx8 s[4:11], s[0:1], 0")
    a("s_load_dwordx2 s[12:13], s[0:1], 32")
    a("s_load_dwordx2 s[14:15], s[0:1], 40")
    a("s_load_dwordx8 s[16:23], s[0:1], 48")
    a(f"s_load_dwordx2 s[{SWS}:{SWS + 1}], s[0:1], 96")
    if cfg["fuse"]:
        a("s_load_dwordx4 s[96:99], s[0:1], 80")
    if cfg["stamps"]:
        a("s_memtime s[84:85]")
        a("s_memrealtime s[88:89]")
    a("v_lshrrev_b32 v1, 6, v0")
    a("v_and_b32 v2, 63, v0")
    a(f"v_readfirstlane_b32 s{S_WAVE}, v1")
    if cfg["map"] == 0:
        a("s_and_b32 s90, s2, 7")
        a("s_lshr_b32 s91, s2, 3")
        a("s_and_b32 s92, s91, 15")
        a("s_lshr_b32 s93, s91, 4")
    else:
        a("s_and_b32 s93, s2, 1")
        a("s_bfe_u32 s92, s2, 0x40003")
        a("s_and_b32 s90, s2, 6")
        a("s_lshr_b32 s3, s2, 7")
        a("s_or_b32 s90, s90, s3")
        a("s_lshl_b32 s91, s93, 4")
        a("s_or_b32 s91, s91, s92")
    a(f"s_lshl_b32 s{S_W2K}, s{S_WAVE}, 11")
    a(f"s_lshr_b32 s94, s{S_WAVE}, 1")
    a(f"s_and_b32 s95, s{S_WAVE}, 1")
    a(f"s_mul_i32 s{S_KH}, s94, {12288 if cfg['lin'] else 4096}")
    a(f"s_mul_i32 s{S_W6K}, s{S_WAVE}, 6144")
    a(f"s_lshl_b32 s{S_QH}, s95, 12")
    a(f"s_mov_b32 s{S_C}, 0x3dd53b95")
    if cfg["codepf"]:
        per = -(-codebytes // 32 // 16) * 16
        assert per <= 4096
        a(f"s_getpc_b64 s[{SCODE}:{SCODE + 1}]")
        a("L_main_pc:")
        a(f"s_mov_b32 s{SCODE + 2}, L_main_end-L_main_pc")
        a(f"s_mov_b32 s{SCODE + 3}, 0x20000")
        a("s_lshr_b32 s3, s2, 3")
        a(f"s_mul_i32 s3, s3, {per}")
        a(f"s_lshl_b32 s59, s{S_WAVE}, 10")
        a(f"s_add_u32 m0, s59, {QX0}")
        a("v_lshlrev_b32 v3, 4, v0")
        a(f"buffer_load_dwordx4 v3, s[{SCODE}:{SCODE + 3}], s3 offen lds")
    if cfg["rot"]:
        a("s_cmp_ge_u32 s92, 10")
        a("s_cselect_b32 s3, 10, 0")
        a("s_sub_u32 s59, s92, s3")
    else:
        a("s_mov_b32 s59, 0")
    for j in range(10):
        a(f"s_lshl_b32 s{TB2 + j}, s59, 7")
        a(f"s_mul_i32 s{TB1 + j}, s59, 786432")
        if j < 9:
            a("s_add_u32 s59, s59, 1")
            a("s_cmp_eq_u32 s59, 10")
            a("s_cselect_b32 s59, 0, s59")
    a("v_lshrrev_b32 v4, 3, v2")
    a("v_bfe_u32 v5, v2, 4, 1")
    a("v_lshlrev_b32 v5, 2, v5")
    a("v_bfe_u32 v6, v2, 5, 1")
    a("v_or_b32 v5, v5, v6")
    a("v_and_b32 v6, 7, v2")
    a("v_xor_b32 v5, v5, v6")
    a("v_lshlrev_b32 v5, 4, v5")
    a("v_xor_b32 v6, 32, v5")
    a(f"s_lshl_b32 s3, s{S_WAVE}, 4")
    a("v_add_u32 v4, s3, v4")
    a("v_add_u32 v7, 8, v4")
    for reg, stride in ((VKV, 384), (VWQ, 12288), (VXO, 1280)):
        a(f"s_movk_i32 s3, {stride}")
        a(f"v_mad_u32_u24 v{reg}, v4, s3, v5")
        a(f"v_mad_u32_u24 v{reg + 1}, v7, s3, v6")
    if cfg["lin"]:
        a("s_movk_i32 s3, 2731")
        for jj, reg in enumerate((VKV, VKV + 1, VKV3)):
            a(f"v_add_u32 v4, {64 * jj}, v2")
            a("v_mul_u32_u24 v4, s3, v4")
            a("v_lshrrev_b32 v4, 16, v4")
            a("v_bfe_u32 v5, v4, 1, 1")
            a("v_bfe_u32 v6, v4, 2, 1")
            a("v_lshl_or_b32 v5, v5, 2, v6")
            a("v_xor_b32 v5, v5, v2")
            a("v_lshlrev_b32 v5, 4, v5")
            a(f"v_add_u32 v{reg}, s{S_W6K}, v5")
    a("v_and_b32 v4, 19, v2")
    a("v_bfe_u32 v5, v2, 2, 1")
    a("v_lshl_or_b32 v4, v5, 3, v4")
    a("v_bfe_u32 v5, v2, 3, 1")
    a("v_lshl_or_b32 v4, v5, 2, v4")
    a("v_bfe_u32 v5, v4, 1, 1")
    a("v_bfe_u32 v6, v4, 2, 2")
    a("v_lshl_or_b32 v5, v5, 2, v6")
    a("v_lshrrev_b32 v6, 5, v2")
    a("v_xor_b32 v5, v5, v6")
    a("v_lshlrev_b32 v5, 4, v5")
    a(f"v_lshl_or_b32 v{RB}, v4, 7, v5")
    a("s_movk_i32 s3, 384")
    a(f"v_mad_u32_u24 v{RBK}, v4, s3, v5")
    a("v_bfe_u32 v4, v2, 2, 2")
    a("v_lshrrev_b32 v6, 5, v2")
    a("v_lshrrev_b32 v5, 1, v4")
    a("v_lshlrev_b32 v5, 2, v5")
    a("v_lshl_or_b32 v5, v6, 1, v5")
    a("v_bfe_u32 v7, v2, 4, 1")
    a("v_lshlrev_b32 v7, 1, v7")
    a("v_and_b32 v8, 1, v2")
    a("v_or_b32 v7, v7, v8")
    a("s_lshl_b32 s3, s94, 2")
    a("v_or_b32 v7, s3, v7")
    a("v_xor_b32 v5, v5, v7")
    a("v_lshlrev_b32 v5, 4, v5")
    a("v_bfe_u32 v8, v2, 1, 1")
    a("v_lshl_or_b32 v5, v8, 3, v5")
    a("v_lshl_or_b32 v7, v6, 3, v4")
    a("s_movk_i32 s3, 384")
    a(f"v_mad_u32_u24 v{TRV}, v7, s3, v5")
    a("v_lshl_or_b32 v5, v4, 7, v5")
    a(f"v_lshl_or_b32 v{TRB}, v6, 10, v5")
    a("v_mul_u32_u24 v4, 43, v2")
    a("v_lshrrev_b32 v4, 7, v4")
    a("v_mul_u32_u24 v5, 3, v4")
    a("v_sub_u32 v5, v2, v5")
    a("v_lshlrev_b32 v5, 7, v5")
    a("s_lshl_b32 s3, s92, 2")
    a(f"s_add_u32 s3, s3, s{S_WAVE}")
    a("s_mul_i32 s59, s3, 10")
    a("v_add_u32 v4, s59, v4")
    a("s_movk_i32 s59, 12288")
    a(f"v_mad_u32_u24 v{PFQ}, v4, s59, v5")
    a("s_mul_i32 s59, s3, 30")
    a("v_add_u32 v4, s59, v2")
    a(f"v_lshlrev_b32 v{PFO}, 7, v4")
    a("v_cmp_gt_u32 vcc, 30, v2")
    a("v_mov_b32 v5, 0x7ffffff0")
    a("s_and_b32 s3, s90, 1")
    a(f"v_cndmask_b32 v{PFQ}, v5, v{PFQ}, vcc")
    a(f"v_cndmask_b32 v{PFO}, v5, v{PFO}, vcc")
    a("s_lshl_b32 s3, s3, 2")
    a(f"s_add_u32 s3, s3, s{S_WAVE}")
    a("s_mul_i32 s3, s3, 80")
    a("v_add_u32 v4, s3, v2")
    a("v_lshlrev_b32 v9, 7, v4")
    a("v_cmp_gt_u32 vcc, 16, v2")
    a("v_add_u32 v10, 8192, v9")
    a("s_nop 0")
    a("v_cndmask_b32 v10, v5, v10, vcc")
    a("v_lshlrev_b32 v4, 4, v2")
    a("s_lshl_b32 s3, s95, 12")
    a(f"v_add_u32 v{XR}, s3, v4")
    a("s_lshl_b32 s3, s94, 11")
    a(f"v_add_u32 v{XW}, s3, v{XR}")
    a(f"v_add_u32 v{VST}, s{S_W2K}, v4")
    a("s_waitcnt lgkmcnt(0)")
    a("s_cmp_eq_u32 s93, 0")
    for dst, pa, pb in ((SX, 4, 14), (SK, 6, 16), (SV, 8, 18), (SWQ, 10, 20), (SWO, 12, 22)):
        a(f"s_cselect_b32 s{dst}, s{pa}, s{pb}")
        a(f"s_cselect_b32 s{dst + 1}, s{pa + 1}, s{pb + 1}")

    def shift(srd, sreg, size):
        a(f"s_add_u32 s{srd}, s{srd}, s{sreg}")
        a(f"s_addc_u32 s{srd + 1}, s{srd + 1}, 0")
        a(f"s_mov_b32 s{srd + 2}, {size}")
        a(f"s_mov_b32 s{srd + 3}, 0x20000")

    a("s_mul_i32 s3, s92, 81920")
    shift(SX, 3, 81920)
    a("s_mul_i32 s3, s92, 6291456")
    h0 = 4 if cfg["hstr"] == 1 else 1
    span = 3 * cfg["hstr"] + 1
    a(f"s_mul_i32 s59, s90, {h0 * 196608}")
    a("s_add_u32 s3, s3, s59")
    shift(SK, 3, span * 196608)
    shift(SV, 3, span * 196608)
    a(f"s_mul_i32 s3, s90, {h0 * 384}")
    shift(SWQ, 3, 639 * 12288 + span * 384)
    a(f"s_mul_i32 s3, s90, {h0 * 245760}")
    shift(SWO, 3, span * 245760)
    if cfg["fuse"]:
        for dst in (SRD_F, SRD_P):
            a(f"s_mov_b32 s{dst}, s{SWS}")
            a(f"s_mov_b32 s{dst + 1}, s{SWS + 1}")
        a("s_lshl_b32 s3, s91, 10")
        a(f"s_add_u32 s3, s3, {INBOX}")
        shift(SRD_F, 3, 1024)
        a("s_mul_i32 s3, s91, 655360")
        shift(SRD_P, 3, 655360)
        a(f"s_mov_b32 s{SRD_O}, s96")
        a(f"s_mov_b32 s{SRD_O + 1}, s97")
        a(f"s_mov_b32 s{SRD_O + 2}, 2621440")
        a(f"s_mov_b32 s{SRD_O + 3}, 0x20000")
        a(f"s_mov_b32 s{SRD_D}, s98")
        a(f"s_mov_b32 s{SRD_D + 1}, s99")
        a("s_and_b32 s3, s91, 1")
        a("s_lshl_b32 s3, s3, 7")
        a("s_lshr_b32 s59, s91, 1")
        a("s_lshl_b32 s59, s59, 2")
        a("s_add_u32 s3, s3, s59")
        shift(SRD_D, 3, 4)
    a("s_lshl_b32 s3, s91, 3")
    a("s_add_u32 s3, s3, s90")
    a("s_mul_i32 s3, s3, 81920")
    shift(SWS, 3, 81920)
    if cfg["fuse"]:
        a(f"s_cmp_eq_u32 s{S_WAVE}, 0")
        a("s_cbranch_scc0 L_clr_skip")
        a("s_lshl_b32 s3, s90, 7")
        a(f"v_mov_b32 v{T0}, 0")
        a("s_mov_b64 exec, 1")
        a(f"buffer_store_dword v{T0}, v{T0}, s[{SRD_F}:{SRD_F + 3}], s3 offen sc1")
        a("s_mov_b64 exec, -1")
        a("L_clr_skip:")
        a(f"v_mov_b32 v{VRDY}, 0")
    if cfg["pf"]:
        a(f"buffer_load_dword v{PFD}, v{PFQ}, s[{SWQ}:{SWQ + 3}], 0 offen")
        a(f"buffer_load_dword v{PFD}, v9, s[{SX}:{SX + 3}], 0 offen")
        a(f"buffer_load_dword v{PFD}, v10, s[{SX}:{SX + 3}], 0 offen")
    return o


def stamp_epilogue():
    o = []
    a = o.append
    a("s_waitcnt vmcnt(0)")
    a("s_memrealtime s[86:87]")
    a("s_load_dwordx2 s[4:5], s[0:1], 96")
    a("s_waitcnt lgkmcnt(0)")
    a("s_getreg_b32 s6, hwreg(HW_REG_HW_ID)")
    a("s_getreg_b32 s7, hwreg(HW_REG_XCC_ID)")
    a("v_writelane_b32 v251, s6, 60")
    a("v_writelane_b32 v251, s7, 61")
    a("v_writelane_b32 v251, s88, 62")
    a("v_writelane_b32 v251, s86, 63")
    a("s_add_u32 s4, s4, 0x4000000")
    a("s_addc_u32 s5, s5, 0")
    a("s_mov_b32 s6, 0x100000")
    a("s_mov_b32 s7, 0x20000")
    a("s_lshl_b32 s3, s2, 2")
    a(f"s_add_u32 s3, s3, s{S_WAVE}")
    a("s_mul_i32 s3, s3, 768")
    a(f"v_lshrrev_b32 v4, 2, v{XR}")
    a("v_and_b32 v4, 255, v4")
    a("buffer_store_dword v249, v4, s[4:7], s3 offen")
    a("buffer_store_dword v250, v4, s[4:7], s3 offen offset:256")
    a("buffer_store_dword v251, v4, s[4:7], s3 offen offset:512")
    return o


def reduce_kernel(name):
    o = []
    a = o.append
    a(".p2align 8")
    a(f".type {name},@function")
    a(f"{name}:")
    a("s_cmp_ge_u32 s2, 640")
    a("s_cbranch_scc1 L_red_end")
    a("s_load_dwordx2 s[4:5], s[0:1], 96")
    a("s_load_dwordx2 s[8:9], s[0:1], 80")
    a("s_mul_hi_u32 s12, s2, 0x0cccccd0")
    a("s_mul_i32 s13, s12, 20")
    a("s_sub_u32 s13, s2, s13")
    a("s_lshr_b32 s14, s13, 1")
    a("s_and_b32 s15, s13, 1")
    a("v_lshrrev_b32 v1, 3, v0")
    a("v_bfe_u32 v2, v0, 2, 1")
    a("v_bfe_u32 v3, v0, 1, 1")
    a("v_and_b32 v4, 1, v0")
    a("v_lshlrev_b32 v5, 12, v2")
    a("v_lshl_or_b32 v5, v3, 10, v5")
    a("v_lshl_or_b32 v5, v4, 9, v5")
    a("v_lshl_or_b32 v5, v1, 4, v5")
    a("s_mul_i32 s16, s12, 655360")
    a("s_lshl_b32 s17, s14, 13")
    a("s_add_u32 s16, s16, s17")
    a("s_lshl_b32 s17, s15, 11")
    a("s_add_u32 s16, s16, s17")
    a("s_waitcnt lgkmcnt(0)")
    a("s_mov_b32 s6, 20971520")
    a("s_mov_b32 s7, 0x20000")
    a("s_mov_b32 s10, 2621440")
    a("s_mov_b32 s11, 0x20000")
    for j in range(8):
        a(f"buffer_load_dwordx4 v[{16 + 4 * j}:{19 + 4 * j}], v5, s[4:7], s16 offen")
        if j < 7:
            a("s_add_u32 s16, s16, 81920")
    a("v_and_b32 v6, 19, v1")
    a("v_bfe_u32 v7, v1, 2, 1")
    a("v_lshl_or_b32 v6, v7, 3, v6")
    a("v_bfe_u32 v7, v1, 3, 1")
    a("v_lshl_or_b32 v6, v7, 2, v6")
    a("s_movk_i32 s18, 2560")
    a("v_and_b32 v7, 7, v0")
    a("v_lshlrev_b32 v7, 4, v7")
    a("v_mad_u32_u24 v6, v6, s18, v7")
    a("s_and_b32 s19, s12, 15")
    a("s_lshl_b32 s19, s19, 1")
    a("s_add_u32 s19, s19, s15")
    a("s_mul_i32 s19, s19, 81920")
    a("s_lshr_b32 s20, s12, 4")
    a("s_mul_i32 s20, s20, 1280")
    a("s_add_u32 s19, s19, s20")
    a("s_lshl_b32 s20, s14, 7")
    a("s_add_u32 s19, s19, s20")
    a("s_mov_b32 s21, 0xffff0000")
    for j in range(8):
        a(f"s_waitcnt vmcnt({7 - j})")
        for d in range(4):
            src = 16 + 4 * j + d
            if j == 0:
                a(f"v_lshlrev_b32 v{8 + 2 * d}, 16, v{src}")
                a(f"v_and_b32 v{9 + 2 * d}, s21, v{src}")
            else:
                a(f"v_lshlrev_b32 v48, 16, v{src}")
                a(f"v_and_b32 v49, s21, v{src}")
                a(f"v_add_f32 v{8 + 2 * d}, v{8 + 2 * d}, v48")
                a(f"v_add_f32 v{9 + 2 * d}, v{9 + 2 * d}, v49")
    for d in range(4):
        a(f"v_cvt_pk_bf16_f32 v{52 + d}, v{8 + 2 * d}, v{9 + 2 * d}")
    a("buffer_store_dwordx4 v[52:55], v6, s[8:11], s19 offen")
    a("L_red_end:")
    a("s_endpgm")
    return o


def kd(name, nv, acc, ns):
    return [".p2align 6", f".amdhsa_kernel {name}", f"  .amdhsa_next_free_vgpr {nv}", f"  .amdhsa_next_free_sgpr {ns}",
            f"  .amdhsa_accum_offset {acc}", "  .amdhsa_group_segment_fixed_size 0", "  .amdhsa_kernarg_size 104",
            "  .amdhsa_user_sgpr_count 2", "  .amdhsa_user_sgpr_kernarg_segment_ptr 1",
            "  .amdhsa_system_sgpr_workgroup_id_x 1", "  .amdhsa_float_denorm_mode_32 3", ".end_amdhsa_kernel"]


def generate(**kw):
    cfg = dict(DEFAULT)
    cfg.update(kw)
    if cfg["fuse"] and "sc1" not in cfg["st_flags"]:
        cfg["st_flags"] = (cfg["st_flags"] + " sc1").strip()
    prog, seq = build_main(cfg)
    prog = [I("", "dma", tag=-1)] * (cfg["codepf"] + 3 * cfg["pf"]) + prog
    body, stats = finalize(prog)
    body = [t for t in body if t]
    est = sum(4 if (t.startswith("s_") and not any(x in t for x in ("s_add_u32", "s_mov_b32"))) else 8 for t in body) + 1024
    main = BASE + "_kernel"
    red = "reduce_partials_kernel"
    hdr = open("cdna_kernels/" + BASE + ".s.ref").read().split("\n")
    o = [l for l in hdr if l.startswith(";   offset") or l.startswith("; Kernarg")]
    if cfg["fuse"]:
        o.append("; @launch grid=(256,1,1) block=(256,1,1) lds=163840")
    else:
        o.append(f"; @launch kernel={main} grid=(256,1,1) block=(256,1,1) lds=163840")
        o.append(f"; @launch kernel={red} grid=(640,1,1) block=(256,1,1) lds=0")
    o += ['.amdgcn_target "amdgcn-amd-amdhsa--gfx950"', ".text", f".globl {main}", ".p2align 8", f".type {main},@function", f"{main}:"]
    o += prologue(cfg, min(est, 131072))
    o += body
    if cfg["fuse"]:
        if cfg["stamps"]:
            o += [x.t for x in stamp(len(seq))]
        o += final_reduce(cfg)
    if cfg["stamps"]:
        o += [x.t for x in stamp(len(seq) + 1)]
        o += stamp_epilogue()
    o.append("s_endpgm")
    o.append("L_main_end:")
    if not cfg["fuse"]:
        o.append(f".globl {red}")
        o += reduce_kernel(red)
    o.append('.section .rodata,"a"')
    o += kd(main, 512, 256, 102)
    if not cfg["fuse"]:
        o += kd(red, 64, 64, 32)
    return "\n".join(o) + "\n", dict(stats=stats, n=len(body), est=est, seq=seq)


if __name__ == "__main__":
    kw = eval("dict(" + (sys.argv[2] if len(sys.argv) > 2 else "") + ")")
    txt, info = generate(**kw)
    open(sys.argv[1], "w").write(txt)
    print(len(txt), "bytes;", info["n"], "instrs; est code", info["est"], info["stats"])
```
